```python
import torch

def _softmax(x, axis=-1):
    return torch.softmax(x, dim=axis)
def _gelu(x):
    return torch.nn.functional.gelu(x, approximate="tanh")
def _silu(x):
    return torch.nn.functional.silu(x)
def _sigmoid(x):
    return torch.sigmoid(x)
def _layernorm(x, axis=-1, eps=1e-5):
    m = x.mean(dim=axis, keepdim=True)
    v = x.var(dim=axis, keepdim=True, unbiased=False)
    return (x - m) / torch.sqrt(v + eps)
def _scatter_add(tgt, idx, src, axis=0):
    return tgt.clone().index_add_(axis, idx, src)
def _segment_sum(src, seg, n):
    out = torch.zeros((n,) + src.shape[1:], dtype=src.dtype)
    return out.index_add_(0, seg, src)
def _pad(x, pw):
    flat = tuple(v for pair in reversed(pw) for v in pair)
    return torch.nn.functional.pad(x, flat)

kernel_name = 'parallel_sum__ssm_conv_s5__mixer_token_mlp__prompt'

def setup_inputs():

    _w = (lambda a: (lambda t: t.to(torch.bfloat16) if t.is_floating_point() else t)(torch.as_tensor(a)))
    def _A_setup():
        B, S, D = 1, 2048, 1024
        P = D
        Lambda_re = -0.5 * (lambda _x: torch.exp(torch.as_tensor(_x)))((lambda *s: torch.randn(*s, dtype=torch.bfloat16) * 0.1)(P))
        Lambda_im = (lambda *s: torch.randn(*s, dtype=torch.bfloat16) * 0.4)(P) * 1.0
        B_re = (lambda *s: torch.randn(*s, dtype=torch.bfloat16) * 0.2)(P, D) * (D ** -0.5)
        B_im = (lambda *s: torch.randn(*s, dtype=torch.bfloat16) * 0.2)(P, D) * (D ** -0.5)
        C_re = (lambda *s: torch.randn(*s, dtype=torch.bfloat16) * 0.2)(D, P) * (P ** -0.5)
        C_im = (lambda *s: torch.randn(*s, dtype=torch.bfloat16) * 0.2)(D, P) * (P ** -0.5)
        log_dt = (lambda *s: torch.randn(*s, dtype=torch.bfloat16) * 0.1)(P) * 0.3 - 2.0
        Dskip = (lambda *s: torch.randn(*s, dtype=torch.bfloat16) * 0.05)(D)
        return {
            "x": _w((lambda *s: torch.randn(*s, dtype=torch.bfloat16) * 0.05)(B, S, D)),
            "Lambda_re": _w(Lambda_re),
            "Lambda_im": _w(Lambda_im),
            "B_re": _w(B_re),
            "B_im": _w(B_im),
            "C_re": _w(C_re),
            "C_im": _w(C_im),
            "log_dt": _w(log_dt),
            "Dskip": _w(Dskip),
        }
    _A_in = _A_setup()

    def _B_setup():
        B, S, D, F = 1, 2048, 1024, 3584
        return {
            "x": _w((lambda *s: torch.randn(*s, dtype=torch.bfloat16) * 0.05)(B, S, D)),
            "w1": _w((lambda *s: torch.randn(*s, dtype=torch.bfloat16) * 0.8)(S, F) * (S ** -0.5)),
            "b1": _w((lambda *s: torch.randn(*s, dtype=torch.bfloat16) * 3.2)(F) * 0.02),
            "w2": _w((lambda *s: torch.randn(*s, dtype=torch.bfloat16) * 0.4)(F, S) * (F ** -0.5)),
            "b2": _w((lambda *s: torch.randn(*s, dtype=torch.bfloat16) * 1.6)(S) * 0.02),
        }
    _B_in = _B_setup()

    return {
        "A_x": _A_in["x"],
        "A_Lambda_re": _A_in["Lambda_re"],
        "A_Lambda_im": _A_in["Lambda_im"],
        "A_B_re": _A_in["B_re"],
        "A_B_im": _A_in["B_im"],
        "A_C_re": _A_in["C_re"],
        "A_C_im": _A_in["C_im"],
        "A_log_dt": _A_in["log_dt"],
        "A_Dskip": _A_in["Dskip"],
        "B_x": _B_in["x"],
        "B_w1": _B_in["w1"],
        "B_b1": _B_in["b1"],
        "B_w2": _B_in["w2"],
        "B_b2": _B_in["b2"],
    }

def reference(A_x, A_Lambda_re, A_Lambda_im, A_B_re, A_B_im, A_C_re, A_C_im, A_log_dt, A_Dskip, B_x, B_w1, B_b1, B_w2, B_b2):
    def _A_ref(x, Lambda_re, Lambda_im, B_re, B_im, C_re, C_im, log_dt, Dskip):
        Bsz, L, H = x.shape
        Lam = Lambda_re + 1j * Lambda_im
        Bmat = B_re + 1j * B_im
        Cmat = C_re + 1j * C_im
        dt = torch.exp(log_dt)
        Lam_bar = torch.exp(dt * Lam)
        B_bar = ((Lam_bar - 1.0) / Lam)[:, None] * Bmat
        Bu = torch.einsum("bld,pd->blp", x + 0j, B_bar)
        h = torch.zeros_like(Bu[:, 0, :])
        hs = []
        for t in range(L):
            h = Lam_bar[None, :] * h + Bu[:, t, :]
            hs.append(h)
        hseq = torch.stack(hs, 1)
        y = 2.0 * torch.einsum("blp,dp->bld", hseq, Cmat).real + x * Dskip[None, None, :]
        return y

    def _B_ref(x, w1, b1, w2, b2):
        B, S, D = x.shape
        h = _layernorm(x, axis=-1)
        u = torch.einsum("bsd,sf->bdf", h, w1) + b1
        u = _gelu(u)
        y = torch.einsum("bdf,fs->bds", u, w2) + b2
        return (lambda x, *d: x.permute(*d))(y, 0, 2, 1)

    x = A_x
    xn = _layernorm(x, axis=-1)
    return x + _A_ref(xn, A_Lambda_re, A_Lambda_im, A_B_re, A_B_im, A_C_re, A_C_im, A_log_dt, A_Dskip) + _B_ref(xn, B_w1, B_b1, B_w2, B_b2)
```

```python
import sys, os, struct

OUT = sys.argv[1] if len(sys.argv) > 1 else "parallel_sum__ssm_conv_s5__mixer_token_mlp__prompt.s"
def P(name, default):
    return int(os.environ.get(name, default))

PF_D = P("PF_D", 10)
PF_ON = P("PF_ON", 1)
K0_PFW1 = P("K0_PFW1", 0)
STAMP = P("STAMP", 0)

XN   = 0x0000000
H2   = 0x0400000
HT   = 0x0800000
U    = 0x1000000
COEF = 0x1800000
AGG  = 0x1810000
FLAG = 0x1840000
XCH  = 0x2000000
STMP = 0x2800000
WS_SIZE = 0x3000000
SENT = 0xFFFFFFFF

KA = dict(x=0, lre=8, lim=16, bre=24, bim=32, cre=40, cim=48, ldt=56, dsk=64, w1=80, b1=88, w2=96, b2=104, out=112, dbg=120, ws=128)

L = []
def A(s):
    for line in s.split("\n"):
        L.append(line)

def f32(x):
    return "0x%08x" % struct.unpack("<I", struct.pack("<f", x))[0]

def srd(s, ptr, size):
    A(f"s_mov_b32 s{s}, s{ptr}\ns_mov_b32 s{s+1}, s{ptr+1}\ns_mov_b32 s{s+2}, {size}\ns_mov_b32 s{s+3}, 0x20000")

def kernel_begin(name):
    A(f".text\n.globl {name}\n.p2align 8\n.type {name},@function\n{name}:")

def kernel_desc(name, vgpr, sgpr):
    acc = (vgpr + 3) // 4 * 4
    A('.section .rodata,"a"\n.p2align 6')
    A(f".amdhsa_kernel {name}")
    A(f"  .amdhsa_next_free_vgpr {vgpr}\n  .amdhsa_next_free_sgpr {sgpr}\n  .amdhsa_accum_offset {acc}")
    A("  .amdhsa_group_segment_fixed_size 0\n  .amdhsa_kernarg_size 136\n  .amdhsa_user_sgpr_count 2")
    A("  .amdhsa_user_sgpr_kernarg_segment_ptr 1\n  .amdhsa_system_sgpr_workgroup_id_x 1")
    A("  .amdhsa_float_denorm_mode_32 3\n  .amdhsa_float_denorm_mode_16_64 3")
    A(".end_amdhsa_kernel")

LOG2E = 1.4426950408889634

K0_ROWWG = 512
K0_GRID = K0_ROWWG + 4

def wave_sum(v, tmp, s0):
    A(f"s_nop 1")
    A(f"v_add_f32_dpp {v}, {v}, {v} quad_perm:[1,0,3,2] row_mask:0xf bank_mask:0xf")
    A(f"s_nop 1")
    A(f"v_add_f32_dpp {v}, {v}, {v} quad_perm:[2,3,0,1] row_mask:0xf bank_mask:0xf")
    A(f"s_nop 1")
    A(f"v_add_f32_dpp {v}, {v}, {v} row_half_mirror row_mask:0xf bank_mask:0xf")
    A(f"s_nop 1")
    A(f"v_add_f32_dpp {v}, {v}, {v} row_mirror row_mask:0xf bank_mask:0xf")
    A(f"s_nop 1")
    A(f"v_readlane_b32 s{s0}, {v}, 0\nv_readlane_b32 s{s0+1}, {v}, 16\nv_readlane_b32 s{s0+2}, {v}, 32\nv_readlane_b32 s{s0+3}, {v}, 48")
    A(f"s_nop 1")
    A(f"v_mov_b32 {v}, s{s0}\nv_add_f32 {v}, s{s0+1}, {v}\nv_mov_b32 {tmp}, s{s0+2}\nv_add_f32 {tmp}, s{s0+3}, {tmp}\nv_add_f32 {v}, {v}, {tmp}")

def round_bf16(dst, src):
    A(f"v_cvt_pk_bf16_f32 {dst}, {src}, {src}\nv_and_b32 {dst}, 0xffff0000, {dst}")

def layernorm16(xin, xout, pk):
    A(f"v_add_f32 v60, v{xin}, v{xin+1}\nv_add_f32 v61, v{xin+2}, v{xin+3}")
    for i in range(4, 16, 2):
        A(f"v_add_f32 v60, v60, v{xin+i}\nv_add_f32 v61, v61, v{xin+i+1}")
    A("v_add_f32 v60, v60, v61")
    wave_sum("v60", "v61", 40)
    A(f"v_mul_f32 v60, {f32(1.0/1024)}, v60")
    A(f"v_sub_f32 v62, v{xin}, v60\nv_mul_f32 v63, v62, v62")
    A(f"v_sub_f32 v62, v{xin+1}, v60\nv_mul_f32 v64, v62, v62")
    for i in range(2, 16, 2):
        A(f"v_sub_f32 v62, v{xin+i}, v60\nv_fmac_f32 v63, v62, v62")
        A(f"v_sub_f32 v65, v{xin+i+1}, v60\nv_fmac_f32 v64, v65, v65")
    A("v_add_f32 v63, v63, v64")
    wave_sum("v63", "v61", 40)
    A(f"v_mul_f32 v63, {f32(1.0/1024)}, v63")
    round_bf16("v63", "v63")
    A(f"v_add_f32 v63, {f32(1e-5)}, v63")
    round_bf16("v63", "v63")
    A("v_sqrt_f32 v63, v63\ns_nop 0")
    round_bf16("v63", "v63")
    A("v_rcp_f32 v64, v63")
    round_bf16("v60", "v60")
    A("v_fma_f32 v65, -v63, v64, 1.0\nv_fma_f32 v64, v64, v65, v64")
    for i in range(0, 16, 2):
        A(f"v_sub_f32 v66, v{xin+i}, v60\nv_sub_f32 v67, v{xin+i+1}, v60")
        A(f"v_cvt_pk_bf16_f32 v66, v66, v67")
        A(f"v_and_b32 v67, 0xffff0000, v66\nv_lshlrev_b32 v66, 16, v66")
        A(f"v_mul_f32 v66, v66, v64\nv_mul_f32 v67, v67, v64")
        A(f"v_cvt_pk_bf16_f32 v{pk+i//2}, v66, v67")
        A(f"v_lshlrev_b32 v{xout+i}, 16, v{pk+i//2}\nv_and_b32 v{xout+i+1}, 0xffff0000, v{pk+i//2}")

def gen_k0():
    kernel_begin("k0_kernel")
    A(f"s_cmp_ge_u32 s2, {K0_GRID}\ns_cbranch_scc1 K0_end")
    A(f"s_load_dwordx2 s[44:45], s[0:1], {KA['x']}")
    A(f"s_load_dwordx2 s[46:47], s[0:1], {KA['ws']}")
    A(f"s_load_dwordx2 s[48:49], s[0:1], {KA['out']}")
    A(f"s_load_dwordx2 s[50:51], s[0:1], {KA['dsk']}")
    A(f"s_load_dwordx2 s[52:53], s[0:1], {KA['b2']}")
    A(f"s_load_dwordx4 s[56:59], s[0:1], {KA['bre']}")
    A(f"s_load_dwordx4 s[60:63], s[0:1], {KA['lre']}")
    A(f"s_load_dwordx2 s[64:65], s[0:1], {KA['ldt']}")
    A(f"s_load_dwordx2 s[66:67], s[0:1], {KA['w1']}")
    A("v_lshrrev_b32 v2, 6, v0\nv_and_b32 v1, 63, v0")
    A("v_readfirstlane_b32 s3, v2")
    A("s_waitcnt lgkmcnt(0)")
    srd(4, 44, 2048*1024*2)
    srd(8, 46, WS_SIZE)
    srd(12, 48, 2048*1024*4)
    srd(16, 50, 2048)
    srd(20, 52, 4096)
    srd(24, 56, 2097152)
    srd(28, 58, 2097152)
    srd(32, 66, 14680064)
    A(f"s_cmp_ge_u32 s2, {K0_ROWWG}\ns_cbranch_scc1 K0_coef")
    A("s_lshl_b32 s36, s2, 2\ns_add_u32 s36, s36, s3")
    A("s_lshl_b32 s37, s36, 11")
    A("v_lshlrev_b32 v2, 4, v1")
    A("buffer_load_dwordx4 v[4:7], v2, s[4:7], s37 offen")
    A("buffer_load_dwordx4 v[8:11], v2, s[4:7], s37 offen offset:1024")
    A("buffer_load_dwordx4 v[12:15], v2, s[16:19], 0 offen")
    A("buffer_load_dwordx4 v[16:19], v2, s[16:19], 0 offen offset:1024")
    A("s_lshl_b32 s38, s36, 1\nv_mov_b32 v3, s38")
    A("buffer_load_ushort v3, v3, s[20:23], 0 offen")
    A("v_lshlrev_b32 v90, 7, v0")
    A("s_cmp_ge_u32 s2, 64\ns_cbranch_scc1 K0_t1")
    A("s_lshl_b32 s39, s2, 15\nbuffer_load_dword v91, v90, s[24:27], s39 offen\ns_branch K0_t3")
    A("K0_t1:\ns_cmp_ge_u32 s2, 128\ns_cbranch_scc1 K0_t2")
    A("s_sub_u32 s39, s2, 64\ns_lshl_b32 s39, s39, 15\nbuffer_load_dword v91, v90, s[28:31], s39 offen\ns_branch K0_t3")
    A(f"K0_t2:\ns_cmp_ge_u32 s2, {128+K0_PFW1}\ns_cbranch_scc1 K0_t4")
    A("s_sub_u32 s39, s2, 128\ns_lshl_b32 s39, s39, 15\nbuffer_load_dword v91, v90, s[32:35], s39 offen")
    A("K0_t3:\ns_waitcnt vmcnt(1)\ns_branch K0_t5")
    A("K0_t4:\ns_waitcnt vmcnt(0)")
    A("K0_t5:")
    A("s_cmp_ge_u32 s2, 128\ns_cbranch_scc1 K0_nosent")
    A(f"v_lshlrev_b32 v92, 2, v0\nv_mov_b32 v93, {SENT}\ns_lshl_b32 s39, s2, 10\ns_add_u32 s39, s39, {AGG}")
    A("buffer_store_dword v93, v92, s[8:11], s39 offen")
    A("s_cmp_ge_u32 s2, 64\ns_cbranch_scc1 K0_nosent")
    A(f"v_mov_b32 v94, 0\ns_lshl_b32 s39, s2, 10\ns_add_u32 s39, s39, {FLAG}")
    A("buffer_store_dword v94, v92, s[8:11], s39 offen")
    A("K0_nosent:")
    for i in range(8):
        A(f"v_lshlrev_b32 v{20+2*i}, 16, v{4+i}\nv_and_b32 v{21+2*i}, 0xffff0000, v{4+i}")
    layernorm16(20, 36, 68)
    A(f"s_add_u32 s39, s37, {XN}")
    A("buffer_store_dwordx4 v[68:71], v2, s[8:11], s39 offen")
    A("buffer_store_dwordx4 v[72:75], v2, s[8:11], s39 offen offset:1024")
    A("v_lshlrev_b32 v3, 16, v3")
    for i in range(8):
        A(f"v_lshlrev_b32 v60, 16, v{12+i}\nv_and_b32 v61, 0xffff0000, v{12+i}")
        A(f"v_mul_f32 v60, v60, v{36+2*i}\nv_mul_f32 v61, v61, v{37+2*i}")
        A(f"v_cvt_pk_bf16_f32 v60, v60, v61")
        A(f"v_and_b32 v61, 0xffff0000, v60\nv_lshlrev_b32 v60, 16, v60")
        A(f"v_add_f32 v{20+2*i}, v{20+2*i}, v60\nv_add_f32 v{21+2*i}, v{21+2*i}, v61")
        A(f"v_add_f32 v{20+2*i}, v{20+2*i}, v3\nv_add_f32 v{21+2*i}, v{21+2*i}, v3")
    A("v_lshlrev_b32 v95, 5, v1\ns_lshl_b32 s39, s36, 12")
    A("buffer_store_dwordx4 v[20:23], v95, s[12:15], s39 offen")
    A("buffer_store_dwordx4 v[24:27], v95, s[12:15], s39 offen offset:16")
    A("buffer_store_dwordx4 v[28:31], v95, s[12:15], s39 offen offset:2048")
    A("buffer_store_dwordx4 v[32:35], v95, s[12:15], s39 offen offset:2064")
    layernorm16(36, 96, 76)
    A(f"s_add_u32 s39, s37, {H2}")
    A("buffer_store_dwordx4 v[76:79], v2, s[8:11], s39 offen")
    A("buffer_store_dwordx4 v[80:83], v2, s[8:11], s39 offen offset:1024")
    A("s_endpgm")
    A("K0_coef:")
    srd(4, 60, 2048)
    srd(12, 62, 2048)
    srd(16, 64, 2048)
    A(f"s_sub_u32 s36, s2, {K0_ROWWG}\ns_lshl_b32 s36, s36, 8")
    A("v_add_u32 v2, s36, v0\nv_lshlrev_b32 v3, 1, v2")
    A("buffer_load_ushort v4, v3, s[4:7], 0 offen\nbuffer_load_ushort v5, v3, s[12:15], 0 offen\nbuffer_load_ushort v6, v3, s[16:19], 0 offen")
    A("s_waitcnt vmcnt(0)")
    A("v_lshlrev_b32 v4, 16, v4\nv_lshlrev_b32 v5, 16, v5\nv_lshlrev_b32 v6, 16, v6")
    A(f"v_mul_f32 v6, {f32(LOG2E)}, v6\nv_exp_f32 v6, v6\ns_nop 0")
    round_bf16("v6", "v6")
    A("v_mul_f32 v7, v6, v4\nv_mul_f32 v8, v6, v5")
    A(f"v_mul_f32 v9, {f32(LOG2E)}, v7\nv_exp_f32 v9, v9")
    A(f"v_mul_f32 v10, {f32(0.15915494309189535)}, v8\nv_fract_f32 v10, v10")
    A("v_cos_f32 v11, v10\nv_sin_f32 v12, v10\ns_nop 0")
    A("v_mul_f32 v20, v9, v11\nv_mul_f32 v21, v9, v12")
    A("v_add_f32 v13, -1.0, v20")
    A("v_mul_f32 v14, v4, v4\nv_fmac_f32 v14, v5, v5\nv_rcp_f32 v15, v14\ns_nop 0")
    A("v_fma_f32 v16, -v14, v15, 1.0\nv_fma_f32 v15, v15, v16, v15\nv_add_f32 v15, v15, v15")
    A("v_mul_f32 v22, v13, v4\nv_fmac_f32 v22, v21, v5\nv_mul_f32 v22, v22, v15")
    A("v_mul_f32 v23, v21, v4\nv_fma_f32 v23, -v13, v5, v23\nv_mul_f32 v23, v23, v15")
    A("v_mov_b32 v24, v20\nv_mov_b32 v25, v21")
    def csq(r, i):
        A(f"v_mul_f32 v16, v{r}, v{r}\nv_fma_f32 v16, -v{i}, v{i}, v16\nv_mul_f32 v17, v{r}, v{i}\nv_add_f32 v{i}, v17, v17\nv_mov_b32 v{r}, v16")
    for _ in range(5): csq(24, 25)
    A("v_mov_b32 v26, v24\nv_mov_b32 v27, v25")
    for _ in range(2): csq(26, 27)
    A(f"v_lshlrev_b32 v3, 5, v2\ns_mov_b32 s37, {COEF}")
    A("buffer_store_dwordx4 v[20:23], v3, s[8:11], s37 offen")
    A("buffer_store_dwordx4 v[24:27], v3, s[8:11], s37 offen offset:16")
    A("K0_end:\ns_endpgm")

SLOT = 16384
BREG = 65536
LDS_X = 131072
FR = 128
AADDR = 8
BADDR = 12

def cons_addr(typ, perm, dst, swx, region, xorblk=None):
    if typ == 'N':
        A("v_and_b32 v2, 31, v1")
        if perm:
            A("v_lshrrev_b32 v3, 3, v2\nv_lshlrev_b32 v3, 2, v3")
            A("v_and_b32 v4, 3, v2\nv_add_u32 v3, v3, v4")
            A("v_and_b32 v4, 4, v2\nv_lshlrev_b32 v4, 3, v4\nv_add_u32 v2, v3, v4")
        A(f"s_lshl_b32 s90, s{swx}, 6\nv_add_u32 v2, s90, v2")
        A("v_lshrrev_b32 v3, 1, v2\nv_and_b32 v3, 7, v3")
        A("v_lshrrev_b32 v4, 5, v1\nv_xor_b32 v3, v3, v4")
        A("v_lshlrev_b32 v3, 4, v3\nv_lshlrev_b32 v2, 7, v2\nv_add_u32 v2, v2, v3")
        A(f"v_add_u32 v{dst}, {region}, v2")
        for kk in range(1, 4):
            A(f"v_xor_b32 v{dst+kk}, {kk*32}, v{dst}")
    else:
        A("v_and_b32 v2, 3, v1")
        A("v_bfe_u32 v3, v1, 2, 2")
        A("v_bfe_u32 v4, v1, 4, 1")
        A("v_lshrrev_b32 v5, 5, v1")
        if perm:
            A("v_and_b32 v6, 1, v2\nv_lshlrev_b32 v6, 2, v6\nv_add_u32 v6, v6, v4\nv_lshrrev_b32 v2, 1, v2")
            bx = 32
        else:
            A("v_lshrrev_b32 v6, 1, v2\nv_lshlrev_b32 v4, 1, v4\nv_add_u32 v6, v6, v4\nv_and_b32 v2, 1, v2")
            bx = 64
        A(f"s_lshl_b32 s90, s{swx}, 3")
        if xorblk is not None:
            A(f"s_lshl_b32 s91, s{xorblk}, 2\ns_add_u32 s90, s90, s91")
        A("v_add_u32 v6, s90, v6")
        A("v_and_b32 v7, 1, v3\nv_mul_u32_u24 v7, 6, v7\nv_and_b32 v4, 2, v3\nv_lshlrev_b32 v4, 2, v4\nv_add_u32 v7, v7, v4")
        A("v_xor_b32 v6, v6, v7\nv_lshlrev_b32 v6, 4, v6\nv_lshlrev_b32 v2, 3, v2\nv_add_u32 v6, v6, v2")
        A("v_lshlrev_b32 v5, 3, v5\nv_add_u32 v5, v5, v3\nv_lshlrev_b32 v5, 8, v5\nv_add_u32 v6, v6, v5")
        A(f"v_add_u32 v{dst}, {region}, v6\nv_xor_b32 v{dst+1}, {bx}, v{dst}")

def frag_reads(typ, perm, addr, slot, kk, dst):
    r = []
    for b in range(2):
        if typ == 'N':
            off = slot*SLOT + b*(2048 if perm else 4096)
            r.append(f"ds_read_b128 v[{dst+4*b}:{dst+4*b+3}], v{addr+kk} offset:{off}")
        else:
            for rd in range(2):
                off = slot*SLOT + (kk*16 + 4*rd)*256
                r.append(f"ds_read_b64_tr_b16 v[{dst+4*b+2*rd}:{dst+4*b+2*rd+1}], v{addr+b} offset:{off}")
    return r

def set_reads(tA, tB, slot, kk, fs):
    a = frag_reads(tA, True, AADDR, slot, kk, FR + fs*16)
    b = frag_reads(tB, False, BADDR, slot, kk, FR + fs*16 + 8)
    ha, hb = len(a)//2, len(b)//2
    return a[:ha] + b[:hb] + b[hb:] + a[ha:]

def cons_loop(tag, tA, tB, nsteps, acc, slot0=0):
    assert nsteps % 4 == 0 and slot0 == 0
    nr = len(set_reads(tA, tB, 0, 0, 0))
    A("s_barrier")
    for x in set_reads(tA, tB, 0, 0, 0): A(x)
    for x in set_reads(tA, tB, 0, 1, 1): A(x)
    def body(last):
        for st in range(4):
            for kk in range(4):
                fs = kk
                final = last and st == 3
                if kk < 2:
                    rd = set_reads(tA, tB, st, kk+2, (kk+2) % 4)
                elif not final:
                    rd = set_reads(tA, tB, (st+1) % 4, kk-2, (kk+2) % 4)
                else:
                    rd = []
                w = nr if not (final and kk == 3) else 0
                A(f"s_waitcnt lgkmcnt({min(w,15)})")
                fa = FR + fs*16
                mf = []
                for (mb, nb) in ((0,0),(0,1),(1,1),(1,0)):
                    d = acc + (mb*2+nb)*16
                    mf.append(f"v_mfma_f32_32x32x16_bf16 v[{d}:{d+15}], v[{fa+4*mb}:{fa+4*mb+3}], v[{fa+8+4*nb}:{fa+8+4*nb+3}], v[{d}:{d+15}]")
                per = (len(rd) + 2) // 3 if rd else 0
                ri = 0
                for m in range(4):
                    A(mf[m])
                    if m == 0 and kk == 2 and not final:
                        A("s_barrier")
                    if m < 3:
                        for x in rd[ri:ri+per]: A(x)
                        ri += per
                assert ri >= len(rd)
    nit = nsteps // 4 - 1
    if nit > 0:
        A(f"s_mov_b32 s92, {nit}")
        A(f"{tag}_loop:")
        body(False)
        A(f"s_sub_u32 s92, s92, 1\ns_cmp_lg_u32 s92, 0\ns_cbranch_scc1 {tag}_loop")
    body(True)

def zero_regs(base, n):
    for i in range(n): A(f"v_mov_b32 v{base+i}, 0")

def prod_voff(typ, pitch, dst):
    if typ == 'N':
        A("v_lshrrev_b32 v2, 3, v1\nv_and_b32 v3, 7, v1\nv_lshrrev_b32 v4, 1, v2\nv_xor_b32 v3, v3, v4")
        A(f"s_mov_b32 s90, {pitch}\nv_mul_lo_u32 v2, v2, s90\nv_lshlrev_b32 v3, 4, v3")
        A(f"v_add_u32 v{dst}, v2, v3\nv_xor_b32 v3, 64, v3\nv_add_u32 v{dst+1}, v2, v3")
    else:
        A("v_lshrrev_b32 v2, 4, v1\nv_and_b32 v3, 15, v1")
        A("v_and_b32 v4, 1, v2\nv_mul_u32_u24 v4, 6, v4\nv_and_b32 v5, 2, v2\nv_lshlrev_b32 v5, 2, v5\nv_add_u32 v4, v4, v5\nv_xor_b32 v3, v3, v4")
        A(f"s_mov_b32 s90, {pitch}\nv_mul_lo_u32 v2, v2, s90\nv_lshlrev_b32 v3, 4, v3\nv_add_u32 v{dst}, v2, v3")

def prod_issue(seg, region):
    typ, pitch, voff = seg['typ'], seg['pitch'], seg['voff']
    A("s_mov_b32 m0, s80")
    for j in range(16):
        sr = seg['srd'](j)
        ro = seg['rowoff'](j)
        v = voff + (j & 1) if typ == 'N' else voff
        if ro == 0:
            A("s_nop 0")
            A(f"buffer_load_dwordx4 v{v}, s[{sr}:{sr+3}], s81 offen lds")
        else:
            A(f"s_add_u32 s83, s81, {ro}")
            A(f"buffer_load_dwordx4 v{v}, s[{sr}:{sr+3}], s83 offen lds")
        if j < 15:
            A("s_add_u32 m0, m0, 1024")
    step = 128 if typ == 'N' else 64*pitch
    A(f"s_add_u32 s81, s81, {step}")
    A(f"s_add_u32 s80, s80, {SLOT}\ns_and_b32 s80, s80, 0xffff")
    if region: A(f"s_or_b32 s80, s80, {region}")

def producer(tag, segs, region, short_after=None, short_sreg=None):
    A(f"s_mov_b32 s80, {region}")
    first = True
    for si, seg in enumerate(segs):
        seg['start']()
        n = seg['n']
        if first:
            for i in range(4): prod_issue(seg, region)
            A("s_waitcnt vmcnt(48)\ns_barrier\ns_waitcnt vmcnt(32)\ns_barrier")
            n -= 4
            first = False
        A(f"s_mov_b32 s84, {n}")
        A(f"{tag}_seg{si}:")
        A("s_waitcnt vmcnt(16)\ns_barrier")
        prod_issue(seg, region)
        A(f"s_sub_u32 s84, s84, 1\ns_cmp_lg_u32 s84, 0\ns_cbranch_scc1 {tag}_seg{si}")
        if short_after == si:
            A(f"s_cmp_eq_u32 s{short_sreg}, 0\ns_cbranch_scc1 {tag}_tail")
    A(f"{tag}_tail:")
    A("s_waitcnt vmcnt(16)\ns_barrier\ns_waitcnt vmcnt(0)\ns_barrier")

def prefetcher(tag, segs, short_after=None, short_sreg=None):
    D = PF_D
    def emit_pf(seg):
        if not PF_ON: return
        for op in seg['ops']:
            A(f"buffer_load_dword v40, v{op['voff']}, s[{op['srd']}:{op['srd']+3}], s{op['sreg']} offen")
            A(f"s_add_u32 s{op['sreg']}, s{op['sreg']}, {op['step']}")
    def skip_pf(seg, k):
        for op in seg['ops']:
            A(f"s_add_u32 s{op['sreg']}, s{op['sreg']}, {op['step']*k}")
    for seg in segs: seg['start']()
    def path(segl, ptag):
        total = sum(s['n'] for s in segl)
        owner = []
        for s in segl: owner += [s]*s['n']
        skip_pf(segl[0], 4)
        for t in range(4, D): emit_pf(owner[t])
        s = 0
        ri = 0
        while s < total:
            o = owner[s+D] if s + D < total else None
            e = s
            while e < total and ((owner[e+D] if e + D < total else None) is o): e += 1
            cnt = e - s
            A(f"s_mov_b32 s84, {cnt}")
            A(f"{ptag}_r{ri}:")
            A("s_barrier")
            if o is not None: emit_pf(o)
            A(f"s_sub_u32 s84, s84, 1\ns_cmp_lg_u32 s84, 0\ns_cbranch_scc1 {ptag}_r{ri}")
            ri += 1
            s = e
    if short_after is not None:
        A(f"s_cmp_eq_u32 s{short_sreg}, 0\ns_cbranch_scc1 {tag}_short")
        path(segs, tag + "_l")
        A(f"s_branch {tag}_done")
        A(f"{tag}_short:")
        path(segs[:short_after+1], tag + "_s")
        A(f"{tag}_done:")
    else:
        path(segs, tag + "_l")

def pf_voff(typ, pitch, dst, cnt, sidx, maxline=127):
    A(f"v_min_u32 v2, {cnt-1}, v1\ns_mul_i32 s90, s{sidx}, {cnt}\nv_add_u32 v2, s90, v2\nv_min_u32 v2, {maxline}, v2")
    A(f"s_mov_b32 s90, {pitch}")
    if typ == 'N':
        A(f"v_mul_lo_u32 v{dst}, v2, s90")
    else:
        A(f"v_lshrrev_b32 v3, 1, v2\nv_mul_lo_u32 v3, v3, s90\nv_and_b32 v2, 1, v2\nv_lshlrev_b32 v2, 7, v2\nv_add_u32 v{dst}, v3, v2")

def stamp(idx):
    if not STAMP: return
    A(f"s_memrealtime s[96:97]\ns_waitcnt lgkmcnt(0)\nv_mov_b32 v250, s96\nv_mov_b32 v251, s97")
    A(f"s_lshl_b32 s98, s2, 6\ns_add_u32 s98, s98, {STMP + idx*8}\ns_add_u32 s98, s98, s99\nv_mov_b32 v252, 0")
    A(f"s_cmp_lg_u32 s32, 0\ns_cbranch_scc1 stamp_skip_{len(L)}_")
    lab = f"stamp_skip_{len(L)-1}_"
    L[-1] = f"s_cbranch_scc1 {lab}"
    A(f"buffer_store_dwordx2 v[250:251], v252, s[24:27], s98 offen")
    A(f"{lab}:")

ZR = 0 + 64
AC3 = 192

def gen_k1():
    kernel_begin("k1_kernel")
    A("s_cmp_ge_u32 s2, 256\ns_cbranch_scc1 K1_end")
    A(f"s_load_dwordx4 s[44:47], s[0:1], {KA['bre']}")
    A(f"s_load_dwordx4 s[48:51], s[0:1], {KA['w1']}")
    A(f"s_load_dwordx2 s[52:53], s[0:1], {KA['ws']}")
    A("v_lshrrev_b32 v2, 6, v0\nv_and_b32 v1, 63, v0")
    A("v_readfirstlane_b32 s32, v2")
    A("s_and_b32 s33, s2, 7\ns_lshr_b32 s34, s2, 3")
    A("s_and_b32 s35, s34, 3\ns_lshr_b32 s36, s34, 2")
    A("s_and_b32 s37, s33, 3\ns_lshr_b32 s38, s33, 2")
    A("s_lshl_b32 s39, s37, 2\ns_add_u32 s39, s39, s35")
    A("s_lshl_b32 s40, s38, 3\ns_add_u32 s40, s40, s36")
    A("s_mul_i32 s41, s37, 7\ns_add_u32 s41, s41, s36")
    A("s_lshl_b32 s42, s38, 2\ns_add_u32 s42, s42, s35")
    A("s_cmp_lt_u32 s34, 28\ns_cselect_b32 s43, 1, 0")
    A("s_mov_b32 s99, 0")
    A("s_waitcnt lgkmcnt(0)")
    srd(8, 44, 2097152)
    srd(12, 46, 2097152)
    srd(16, 48, 14680064)
    srd(24, 52, WS_SIZE)
    srd(28, 50, 7168)
    A("s_cmp_eq_u32 s32, 4\ns_cbranch_scc1 K1_prodA")
    A("s_cmp_eq_u32 s32, 5\ns_cbranch_scc1 K1_prodB")
    A("s_cmp_ge_u32 s32, 6\ns_cbranch_scc1 K1_pf")
    stamp(0)
    A("s_lshr_b32 s60, s32, 1\ns_and_b32 s61, s32, 1")
    A("s_lshl_b32 s62, s40, 6\ns_lshl_b32 s63, s61, 5\ns_add_u32 s62, s62, s63")
    A("v_and_b32 v16, 31, v1\nv_add_u32 v16, s62, v16")
    A(f"v_lshlrev_b32 v2, 5, v16\ns_mov_b32 s63, {COEF}")
    A("buffer_load_dwordx4 v[20:23], v2, s[24:27], s63 offen")
    A("buffer_load_dwordx4 v[24:27], v2, s[24:27], s63 offen offset:16")
    cons_addr('N', True, AADDR, 60, 0)
    cons_addr('N', False, BADDR, 61, BREG)
    zero_regs(ZR, 64)
    cons_loop("K1_g1", 'N', 'N', 16, ZR)
    stamp(1)
    A("s_nop 15\ns_waitcnt vmcnt(0)")
    zre = lambda t: ZR + (t//16)*32 + (t % 16)
    zim = lambda t: ZR + (t//16)*32 + 16 + (t % 16)
    A(f"v_mov_b32 v28, v{zre(0)}\nv_mov_b32 v29, v{zim(0)}")
    cur = (28, 29); nxt = (30, 31)
    for t in range(1, 32):
        A(f"v_fma_f32 v{nxt[0]}, v20, v{cur[0]}, v{zre(t)}\nv_fma_f32 v{nxt[1]}, v20, v{cur[1]}, v{zim(t)}")
        A(f"v_fma_f32 v{nxt[0]}, -v21, v{cur[1]}, v{nxt[0]}\nv_fma_f32 v{nxt[1]}, v21, v{cur[0]}, v{nxt[1]}")
        cur, nxt = nxt, cur
    A("v_and_b32 v2, 31, v1\ns_lshl_b32 s63, s61, 5\nv_add_u32 v2, s63, v2\nv_lshlrev_b32 v2, 3, v2")
    A(f"v_add_u32 v17, {LDS_X}, v2")
    A("v_lshrrev_b32 v3, 5, v1\ns_lshl_b32 s63, s60, 1\nv_add_u32 v18, s63, v3")
    A("v_lshlrev_b32 v3, 9, v18\nv_add_u32 v3, v3, v17")
    A(f"ds_write_b64 v3, v[{cur[0]}:{cur[1]}]")
    cons_addr('T', True, AADDR, 60, 0)
    cons_addr('T', False, BADDR, 61, BREG)
    zero_regs(AC3, 64)
    A("s_waitcnt lgkmcnt(0)\ns_barrier")
    A("ds_read_b64 v[32:33], v17\nds_read_b64 v[34:35], v17 offset:512\nds_read_b64 v[36:37], v17 offset:1024\nds_read_b64 v[38:39], v17 offset:1536")
    A("s_waitcnt lgkmcnt(0)")
    def cfma(dr, di, ar, ai, xr, xi, yr, yi):
        A(f"v_fma_f32 v{dr}, v{ar}, v{xr}, v{yr}\nv_fma_f32 v{di}, v{ar}, v{xi}, v{yi}")
        A(f"v_fma_f32 v{dr}, -v{ai}, v{xi}, v{dr}\nv_fma_f32 v{di}, v{ai}, v{xr}, v{di}")
    cfma(34, 35, 24, 25, 32, 33, 34, 35)
    cfma(36, 37, 24, 25, 34, 35, 36, 37)
    cfma(38, 39, 24, 25, 36, 37, 38, 39)
    A("v_mov_b32 v28, 0\nv_mov_b32 v29, 0\nv_mov_b32 v30, 1.0\nv_mov_b32 v31, 0")
    A("v_mul_f32 v40, v24, v24\nv_fma_f32 v40, -v25, v25, v40\nv_mul_f32 v41, v24, v25\nv_add_f32 v41, v41, v41")
    A("v_mul_f32 v42, v40, v24\nv_fma_f32 v42, -v41, v25, v42\nv_mul_f32 v43, v40, v25\nv_fma_f32 v43, v41, v24, v43")
    for sg, (pr, mr) in ((1, (32, 24)), (2, (34, 40)), (3, (36, 42))):
        A(f"v_cmp_eq_u32 vcc, {sg}, v18\ns_nop 1")
        A(f"v_cndmask_b32 v28, v28, v{pr}, vcc\nv_cndmask_b32 v29, v29, v{pr+1}, vcc\nv_cndmask_b32 v30, v30, v{mr}, vcc\nv_cndmask_b32 v31, v31, v{mr+1}, vcc")
    A(f"v_mov_b32 v40, 0x7fc00000\nv_cmp_eq_u32 vcc, -1, v38\ns_nop 1\nv_cndmask_b32 v38, v38, v40, vcc")
    A(f"v_cmp_eq_u32 vcc, -1, v39\ns_nop 1\nv_cndmask_b32 v39, v39, v40, vcc")
    A(f"v_lshlrev_b32 v19, 3, v16")
    A(f"s_lshl_b32 s63, s39, 13\ns_add_u32 s63, s63, {AGG}")
    A("v_cmp_eq_u32 vcc, 0, v18\ns_and_saveexec_b64 s[64:65], vcc\ns_cbranch_execz K1_nopub")
    A("buffer_store_dwordx2 v[38:39], v19, s[24:27], s63 offen sc1")
    A("K1_nopub:\ns_mov_b64 exec, s[64:65]")
    A("s_cmp_eq_u32 s43, 0\ns_cbranch_scc1 K1_scan2")
    A("s_lshl_b32 s63, s41, 8\ns_lshl_b32 s66, s60, 7\ns_add_u32 s63, s63, s66")
    A("v_lshrrev_b32 v2, 5, v1\nv_lshlrev_b32 v2, 6, v2")
    for i in range(4):
        A(f"buffer_load_dwordx4 v[{44+4*i}:{47+4*i}], v2, s[28:31], s63 offen offset:{16*i}")
    cons_loop("K1_g3", 'T', 'T', 32, AC3)
    stamp(2)
    A("s_nop 15\ns_waitcnt vmcnt(0)")
    A("s_lshl_b32 s66, s42, 7\ns_lshl_b32 s67, s61, 6\ns_add_u32 s66, s66, s67")
    A("v_and_b32 v3, 31, v1\nv_add_u32 v3, s66, v3\ns_movk_i32 s67, 7168\nv_mul_lo_u32 v3, v3, s67")
    A("v_add_u32 v3, v3, v2")
    A(f"s_add_u32 s66, s63, {U}")
    A(f"s_add_u32 s67, s66, {32*7168}")
    GC0 = -2.0 * 0.7978845608028654 * LOG2E
    GC1 = GC0 * 0.044715
    A(f"s_mov_b32 s68, {f32(GC0)}\ns_mov_b32 s69, {f32(GC1)}")
    A("v_mov_b32 v60, s68")
    for nb in range(2):
        for mb in range(2):
            base = AC3 + (mb*2+nb)*16
            for q in range(2):
                pk = FR + ((nb*4 + mb*2 + q) % 4)*4
                for e in range(4):
                    r0 = base + q*8 + 2*e; r1 = r0 + 1
                    bb = 44 + mb*8 + q*4 + e
                    t0, t1, t2, t3 = FR+16+4*(e%2), FR+17+4*(e%2), FR+18+4*(e%2), FR+19+4*(e%2)
                    A(f"v_cvt_pk_bf16_f32 v{t0}, v{r0}, v{r1}")
                    A(f"v_lshlrev_b32 v{t2}, 16, v{bb}\nv_and_b32 v{t3}, 0xffff0000, v{bb}")
                    A(f"v_and_b32 v{t1}, 0xffff0000, v{t0}\nv_lshlrev_b32 v{t0}, 16, v{t0}")
                    A(f"v_add_f32 v{t0}, v{t0}, v{t2}\nv_add_f32 v{t1}, v{t1}, v{t3}")
                    A(f"v_cvt_pk_bf16_f32 v{t0}, v{t0}, v{t1}")
                    A(f"v_and_b32 v{t1}, 0xffff0000, v{t0}\nv_lshlrev_b32 v{t0}, 16, v{t0}")
                    A(f"v_mul_f32 v{t2}, v{t0}, v{t0}\nv_mul_f32 v{t3}, v{t1}, v{t1}")
                    A(f"v_fma_f32 v{t2}, v{t2}, s69, v60\nv_fma_f32 v{t3}, v{t3}, s69, v60")
                    A(f"v_mul_f32 v{t2}, v{t2}, v{t0}\nv_mul_f32 v{t3}, v{t3}, v{t1}")
                    A(f"v_exp_f32 v{t2}, v{t2}\nv_exp_f32 v{t3}, v{t3}\ns_nop 0")
                    A(f"v_add_f32 v{t2}, 1.0, v{t2}\nv_add_f32 v{t3}, 1.0, v{t3}")
                    A(f"v_rcp_f32 v{t2}, v{t2}\nv_rcp_f32 v{t3}, v{t3}\ns_nop 0")
                    A(f"v_mul_f32 v{t0}, v{t0}, v{t2}\nv_mul_f32 v{t1}, v{t1}, v{t3}")
                    A(f"v_cvt_pk_bf16_f32 v{pk+e}, v{t0}, v{t1}")
                A(f"buffer_store_dwordx4 v[{pk}:{pk+3}], v3, s[24:27], s{66+nb} offen offset:{mb*32+q*16}")
    stamp(3)
    A("K1_scan2:")
    A("v_mov_b32 v32, 0\nv_mov_b32 v33, 0")
    A("s_cmp_eq_u32 s39, 0\ns_cbranch_scc1 K1_nocarry")
    A("s_mov_b32 s72, 0x40000")
    A("K1_retry:")
    A(f"s_mov_b32 s66, {AGG}")
    for c in range(15):
        A(f"buffer_load_dwordx2 v[{AC3+2*c}:{AC3+2*c+1}], v19, s[24:27], s66 offen sc1")
        if c < 14: A("s_add_u32 s66, s66, 8192")
    A("s_waitcnt vmcnt(0)")
    A("v_mov_b32 v32, 0\nv_mov_b32 v33, 0\ns_mov_b64 s[70:71], 0")
    for c in range(15):
        A(f"v_cmp_eq_u32 vcc, -1, v{AC3+2*c}\ns_or_b64 s[70:71], s[70:71], vcc\nv_cmp_eq_u32 vcc, -1, v{AC3+2*c+1}\ns_or_b64 s[70:71], s[70:71], vcc")
        cfma(34, 35, 26, 27, 32, 33, AC3+2*c, AC3+2*c+1)
        A("v_mov_b32 v32, v34\nv_mov_b32 v33, v35")
        if c < 14:
            A(f"s_cmp_eq_u32 s39, {c+1}\ns_cbranch_scc1 K1_gotall")
    A("K1_gotall:")
    A("s_cmp_eq_u64 s[70:71], 0\ns_cbranch_scc1 K1_nocarry")
    A("s_sleep 8\ns_sub_u32 s72, s72, 1\ns_cmp_lg_u32 s72, 0\ns_cbranch_scc1 K1_retry")
    A("K1_nocarry:")
    cfma(34, 35, 30, 31, 32, 33, 28, 29)
    A("v_lshlrev_b32 v3, 12, v16\nv_lshlrev_b32 v2, 6, v18\nv_add_u32 v3, v3, v2")
    A(f"s_lshl_b32 s66, s39, 8\ns_add_u32 s66, s66, {HT}\ns_add_u32 s67, s66, {1024*4096}")
    cur = (34, 35); nxt = (36, 37)
    for q in range(4):
        pr = FR + (q % 2)*8; pi = pr + 4
        for e in range(4):
            o = []
            for u in range(2):
                t = q*8 + 2*e + u
                A(f"v_fma_f32 v{nxt[0]}, v20, v{cur[0]}, v{zre(t)}\nv_fma_f32 v{nxt[1]}, v20, v{cur[1]}, v{zim(t)}")
                A(f"v_fma_f32 v{nxt[0]}, -v21, v{cur[1]}, v{nxt[0]}\nv_fma_f32 v{nxt[1]}, v21, v{cur[0]}, v{nxt[1]}")
                cur, nxt = nxt, cur
                orr, oi = 40 + 2*u, 41 + 2*u
                A(f"v_mul_f32 v{orr}, v22, v{cur[0]}\nv_mul_f32 v{oi}, -v22, v{cur[1]}")
                A(f"v_fma_f32 v{orr}, -v23, v{cur[1]}, v{orr}\nv_fma_f32 v{oi}, -v23, v{cur[0]}, v{oi}")
            A(f"v_cvt_pk_bf16_f32 v{pr+e}, v40, v42\nv_cvt_pk_bf16_f32 v{pi+e}, v41, v43")
        A(f"buffer_store_dwordx4 v[{pr}:{pr+3}], v3, s[24:27], s66 offen offset:{16*q}")
        A(f"buffer_store_dwordx4 v[{pi}:{pi+3}], v3, s[24:27], s67 offen offset:{16*q}")
    stamp(4)
    A("s_endpgm")
    A("K1_prodA:")
    prod_voff('N', 2048, 8)
    prod_voff('T', 7168, 10)
    def st_xn(): A(f"s_lshl_b32 s81, s39, 18\ns_add_u32 s81, s81, {XN}")
    def st_w1(): A("s_lshl_b32 s81, s41, 8")
    segs = [dict(typ='N', pitch=2048, voff=8, srd=lambda j: 24, rowoff=lambda j: j*8*2048, n=16, start=st_xn),
            dict(typ='T', pitch=7168, voff=10, srd=lambda j: 16, rowoff=lambda j: j*4*7168, n=32, start=st_w1)]
    producer_k1("K1_pa", segs, 0)
    A("s_endpgm")
    A("K1_prodB:")
    prod_voff('N', 2048, 8)
    prod_voff('T', 2048, 10)
    def st_b(): A("s_lshl_b32 s81, s40, 17")
    def st_h2(): A(f"s_lshl_b32 s81, s42, 8\ns_add_u32 s81, s81, {H2}")
    segs = [dict(typ='N', pitch=2048, voff=8, srd=lambda j: 12 if (j//4) % 2 else 8, rowoff=lambda j: ((j//8)*32 + (j % 4)*8)*2048, n=16, start=st_b),
            dict(typ='T', pitch=2048, voff=10, srd=lambda j: 24, rowoff=lambda j: j*4*2048, n=32, start=st_h2)]
    producer_k1("K1_pb", segs, BREG)
    A("s_endpgm")
    A("K1_pf:")
    pf_voff('N', 2048, 8, 16, 36)
    A("s_lshr_b32 s62, s35, 1")
    pf_voff('N', 2048, 9, 32, 62)
    A("s_and_b32 s62, s35, 1\ns_cmp_eq_u32 s62, 1\ns_cselect_b32 s4, s12, s8\ns_cselect_b32 s5, s13, s9\ns_mov_b32 s6, 2097152\ns_mov_b32 s7, 0x20000")
    pf_voff('T', 7168, 10, 32, 35)
    pf_voff('T', 2048, 11, 19, 36)
    def st1(): A(f"s_lshl_b32 s70, s39, 18\ns_add_u32 s70, s70, {XN}\ns_lshl_b32 s71, s40, 17")
    def st3(): A(f"s_lshl_b32 s72, s41, 8\ns_lshl_b32 s73, s42, 8\ns_add_u32 s73, s73, {H2}")
    segs = [dict(n=16, start=st1, ops=[dict(srd=24, voff=8, sreg=70, step=128), dict(srd=4, voff=9, sreg=71, step=128)]),
            dict(n=32, start=st3, ops=[dict(srd=16, voff=10, sreg=72, step=64*7168), dict(srd=24, voff=11, sreg=73, step=64*2048)])]
    prefetcher("K1_pft", segs, short_after=0, short_sreg=43)
    A("s_barrier\ns_waitcnt vmcnt(0)")
    A("K1_end:\ns_endpgm")

def producer_k1(tag, segs, region):
    s0, s1 = segs
    A(f"s_mov_b32 s80, {region}")
    s0['start']()
    for i in range(4): prod_issue(s0, region)
    A("s_waitcnt vmcnt(48)\ns_barrier\ns_waitcnt vmcnt(32)\ns_barrier")
    A("s_mov_b32 s84, 12")
    A(f"{tag}_s0:")
    A("s_waitcnt vmcnt(16)\ns_barrier")
    prod_issue(s0, region)
    A(f"s_sub_u32 s84, s84, 1\ns_cmp_lg_u32 s84, 0\ns_cbranch_scc1 {tag}_s0")
    A(f"s_cmp_eq_u32 s43, 0\ns_cbranch_scc1 {tag}_short")
    s1['start']()
    A("s_waitcnt vmcnt(16)\ns_barrier")
    prod_issue(s1, region)
    A("s_waitcnt vmcnt(16)\ns_barrier")
    prod_issue(s1, region)
    A("s_barrier")
    prod_issue(s1, region)
    prod_issue(s1, region)
    A("s_waitcnt vmcnt(48)\ns_barrier\ns_waitcnt vmcnt(32)\ns_barrier")
    A("s_mov_b32 s84, 28")
    A(f"{tag}_s1:")
    A("s_waitcnt vmcnt(16)\ns_barrier")
    prod_issue(s1, region)
    A(f"s_sub_u32 s84, s84, 1\ns_cmp_lg_u32 s84, 0\ns_cbranch_scc1 {tag}_s1")
    A("s_waitcnt vmcnt(16)\ns_barrier\ns_waitcnt vmcnt(0)\ns_barrier")
    A("s_endpgm")
    A(f"{tag}_short:")
    A("s_waitcnt vmcnt(16)\ns_barrier\ns_waitcnt vmcnt(0)\ns_barrier")
    A("s_barrier")

AC2 = 64
def gen_k2():
    kernel_begin("k2_kernel")
    A("s_cmp_ge_u32 s2, 256\ns_cbranch_scc1 K2_end")
    A(f"s_load_dwordx4 s[44:47], s[0:1], {KA['cre']}")
    A(f"s_load_dwordx2 s[48:49], s[0:1], {KA['w2']}")
    A(f"s_load_dwordx2 s[50:51], s[0:1], {KA['out']}")
    A(f"s_load_dwordx2 s[52:53], s[0:1], {KA['ws']}")
    A("v_lshrrev_b32 v2, 6, v0\nv_and_b32 v1, 63, v0")
    A("v_readfirstlane_b32 s32, v2")
    A("s_and_b32 s33, s2, 7\ns_lshr_b32 s34, s2, 3")
    A("s_and_b32 s43, s33, 1")
    A("s_and_b32 s35, s34, 3\ns_lshr_b32 s40, s34, 2")
    A("s_lshr_b32 s37, s33, 1\ns_lshl_b32 s39, s37, 2\ns_add_u32 s39, s39, s35")
    A("s_mov_b32 s99, 0x8000")
    A("s_waitcnt lgkmcnt(0)")
    srd(8, 44, 2097152)
    srd(12, 46, 2097152)
    srd(16, 48, 14680064)
    srd(24, 52, WS_SIZE)
    srd(28, 50, 2048*1024*4)
    A("s_cmp_eq_u32 s32, 4\ns_cbranch_scc1 K2_prodA")
    A("s_cmp_eq_u32 s32, 5\ns_cbranch_scc1 K2_prodB")
    A("s_cmp_ge_u32 s32, 6\ns_cbranch_scc1 K2_pf")
    stamp(0)
    A("s_lshr_b32 s60, s32, 1\ns_and_b32 s61, s32, 1")
    A("s_lshl_b32 s62, s39, 7\ns_lshl_b32 s63, s61, 6\ns_add_u32 s62, s62, s63\ns_lshl_b32 s63, s43, 5\ns_add_u32 s62, s62, s63")
    A("v_and_b32 v2, 31, v1\nv_add_u32 v2, s62, v2\nv_lshlrev_b32 v2, 12, v2")
    A("v_lshrrev_b32 v3, 5, v1\nv_lshlrev_b32 v3, 7, v3\nv_add_u32 v16, v2, v3")
    A("s_lshl_b32 s64, s40, 9\ns_lshl_b32 s63, s60, 8\ns_add_u32 s64, s64, s63")
    for mb in range(2):
        for q in range(4):
            r = AC2 + mb*32 + q*4
            A(f"buffer_load_dwordx4 v[{r}:{r+3}], v16, s[28:31], s64 offen offset:{mb*64+q*16}")
    cons_addr('N', True, AADDR, 60, 0)
    cons_addr('T', False, BADDR, 61, BREG, xorblk=43)
    zero_regs(AC2+16, 16); zero_regs(AC2+48, 16)
    A("s_waitcnt vmcnt(0)")
    cons_loop("K2_g", 'N', 'T', 44, AC2)
    stamp(1)
    A("s_nop 15")
    A("v_lshlrev_b32 v17, 4, v1")
    A(f"s_lshl_b32 s65, s2, 15\ns_lshl_b32 s66, s32, 13\ns_add_u32 s65, s65, s66\ns_add_u32 s65, s65, {XCH}")
    for mb in range(2):
        for q in range(4):
            r = AC2 + mb*32 + 16 + q*4
            o = (mb*4+q)*1024
            if o >= 4096:
                if o == 4096: A("s_add_u32 s65, s65, 4096")
                o -= 4096
            A(f"buffer_store_dwordx4 v[{r}:{r+3}], v17, s[24:27], s65 offen offset:{o} sc1")
    A(f"s_lshl_b32 s67, s2, 8\ns_lshl_b32 s68, s32, 6\ns_add_u32 s67, s67, s68\ns_add_u32 s67, s67, {FLAG}")
    A("s_xor_b32 s69, s67, 256")
    A("v_mov_b32 v18, 0\nv_mov_b32 v19, 1")
    A("s_waitcnt vmcnt(0)")
    A("buffer_store_dword v19, v18, s[24:27], s67 offen sc1")
    A("s_mov_b32 s72, 0x40000")
    A("K2_poll:")
    A("buffer_load_dword v20, v18, s[24:27], s69 offen sc1")
    A("s_waitcnt vmcnt(0)")
    A("v_readfirstlane_b32 s70, v20\ns_nop 3\ns_cmp_eq_u32 s70, 1\ns_cbranch_scc1 K2_got\ns_sleep 2\ns_sub_u32 s72, s72, 1\ns_cmp_lg_u32 s72, 0\ns_cbranch_scc1 K2_poll")
    A("K2_got:")
    A(f"s_sub_u32 s65, s65, 4096\ns_xor_b32 s65, s65, 0x8000")
    for mb in range(2):
        for q in range(4):
            r = FR + (mb*4+q)*4
            o = (mb*4+q)*1024
            if o >= 4096:
                if o == 4096: A("s_add_u32 s65, s65, 4096")
                o -= 4096
            A(f"buffer_load_dwordx4 v[{r}:{r+3}], v17, s[24:27], s65 offen offset:{o} sc1")
    for mb in range(2):
        for q in range(4):
            i = mb*4+q
            A(f"s_waitcnt vmcnt({7-i + i})") if False else None
            A(f"s_waitcnt vmcnt(7)")
            r = AC2 + mb*32 + q*4
            for e in range(4): A(f"v_add_f32 v{r+e}, v{r+e}, v{FR+i*4+e}")
            A(f"buffer_store_dwordx4 v[{r}:{r+3}], v16, s[28:31], s64 offen offset:{mb*64+q*16}")
    stamp(2)
    A("s_endpgm")
    A("K2_prodA:")
    prod_voff('N', 2048, 8)
    prod_voff('N', 7168, 10)
    def st_c(): A("s_lshl_b32 s81, s40, 18")
    def st_u0(): A(f"s_mul_i32 s81, s40, {128*7168}\ns_add_u32 s81, s81, {U}")
    def st_u1(): A(f"s_mul_i32 s81, s40, {128*7168}\ns_add_u32 s81, s81, {U + 768*2}")
    segC = lambda sr: dict(typ='N', pitch=2048, voff=8, srd=lambda j: sr, rowoff=lambda j: j*8*2048, n=16, start=st_c)
    segU = lambda n, st: dict(typ='N', pitch=7168, voff=10, srd=lambda j: 24, rowoff=lambda j: j*8*7168, n=n, start=st)
    A("s_cmp_eq_u32 s43, 1\ns_cbranch_scc1 K2_prodA1")
    producer("K2_pa0", [segC(8), segC(12), segU(12, st_u0)], 0)
    A("s_endpgm\nK2_prodA1:")
    producer("K2_pa1", [segU(44, st_u1)], 0)
    A("s_endpgm")
    A("K2_prodB:")
    prod_voff('T', 4096, 8)
    def st_h(): A(f"s_lshl_b32 s81, s39, 8\ns_add_u32 s81, s81, {HT}")
    def st_w0(): A("s_lshl_b32 s81, s39, 8")
    def st_w1(): A(f"s_lshl_b32 s81, s39, 8\ns_add_u32 s81, s81, {768*4096}")
    segT = lambda sr, n, st: dict(typ='T', pitch=4096, voff=8, srd=lambda j: sr, rowoff=lambda j: j*4*4096, n=n, start=st)
    A("s_cmp_eq_u32 s43, 1\ns_cbranch_scc1 K2_prodB1")
    producer("K2_pb0", [segT(24, 32, st_h), segT(16, 12, st_w0)], BREG)
    A("s_endpgm\nK2_prodB1:")
    producer("K2_pb1", [segT(16, 44, st_w1)], BREG)
    A("s_endpgm")
    A("K2_pf:")
    pf_voff('N', 2048, 8, 32, 35)
    pf_voff('N', 7168, 9, 32, 35)
    pf_voff('T', 4096, 10, 16, 40)
    A("s_cmp_eq_u32 s43, 1\ns_cbranch_scc1 K2_pf1")
    def p0(): A(f"s_lshl_b32 s70, s40, 18\ns_lshl_b32 s71, s39, 8\ns_add_u32 s71, s71, {HT}")
    def p1(): A("s_lshl_b32 s72, s40, 18")
    def p2(): A(f"s_mul_i32 s73, s40, {128*7168}\ns_add_u32 s73, s73, {U}\ns_lshl_b32 s74, s39, 8")
    opH = dict(srd=24, voff=10, sreg=71, step=64*4096)
    prefetcher("K2_pf0t", [dict(n=16, start=p0, ops=[dict(srd=8, voff=8, sreg=70, step=128), opH]),
                           dict(n=16, start=p1, ops=[dict(srd=12, voff=8, sreg=72, step=128), opH]),
                           dict(n=12, start=p2, ops=[dict(srd=24, voff=9, sreg=73, step=128), dict(srd=16, voff=10, sreg=74, step=64*4096)])])
    A("s_waitcnt vmcnt(0)\ns_endpgm\nK2_pf1:")
    def p3(): A(f"s_mul_i32 s73, s40, {128*7168}\ns_add_u32 s73, s73, {U+768*2}\ns_lshl_b32 s74, s39, 8\ns_add_u32 s74, s74, {768*4096}")
    prefetcher("K2_pf1t", [dict(n=44, start=p3, ops=[dict(srd=24, voff=9, sreg=73, step=128), dict(srd=16, voff=10, sreg=74, step=64*4096)])])
    A("s_waitcnt vmcnt(0)\nK2_end:\ns_endpgm")

hdr = open("parallel_sum__ssm_conv_s5__mixer_token_mlp__prompt.s.ref").read().split("; Override launch geometry")[0]
A(hdr.rstrip())
A(f"; @launch kernel=k0_kernel grid=({K0_GRID},1,1) block=(256,1,1) lds=0")
A(f"; @launch kernel=k1_kernel grid=(256,1,1) block=(448,1,1) lds={LDS_X+4096}")
A(f"; @launch kernel=k2_kernel grid=(256,1,1) block=(448,1,1) lds={LDS_X}")
A('.amdgcn_target "amdgcn-amd-amdhsa--gfx950"')
gen_k0(); gen_k1(); gen_k2()
kernel_desc("k0_kernel", 112, 102)
kernel_desc("k1_kernel", 256, 102)
kernel_desc("k2_kernel", 256, 102)
open(OUT, "w").write("\n".join(L) + "\n")
print("wrote", OUT, len(L), "lines")
```

```python
import sys, os, struct

OUT = sys.argv[1] if len(sys.argv) > 1 else "parallel_sum__ssm_conv_s5__mixer_token_mlp__prompt.s"
def P(name, default):
    return int(os.environ.get(name, default))

STAMP = P("STAMP", 0)
K0_T = P("K0_T", 1)
K0_W1 = P("K0_W1", 0)
K1_PF = P("K1_PF", 1)
K2_MB = P("K2_MB", 8)
SKEW = P("SKEW", 1)
NO_DMA = P("NO_DMA", 0); NO_MFMA = P("NO_MFMA", 0); NO_DS = P("NO_DS", 0)
BAR_AT = P("BAR_AT", 4)

XN   = 0x0000000
H2   = 0x0400000
HT   = 0x0800000
U    = 0x1000000
COEF = 0x1800000
STAT = 0x1808000
AGG  = 0x1810000
FLAG = 0x1840000
XCH  = 0x2000000
STMP = 0x4000000
WS_SIZE = 0x4100000
SENT = 0xFFFFFFFF

KA = dict(x=0, lre=8, lim=16, bre=24, bim=32, cre=40, cim=48, ldt=56, dsk=64, w1=80, b1=88, w2=96, b2=104, out=112, dbg=120, ws=128)

L = []
def A(s):
    for line in s.split("\n"):
        if NO_DMA and line.endswith("offen lds"): line = "s_nop 0"
        if NO_MFMA and line.startswith("v_mfma"): line = "s_nop 0"
        if NO_DS and (line.startswith("ds_read_b128") or line.startswith("ds_read_b64_tr")): line = "s_nop 0"
        L.append(line)

def f32(x):
    return "0x%08x" % struct.unpack("<I", struct.pack("<f", x))[0]

def srd(s, ptr, size):
    A(f"s_mov_b32 s{s}, s{ptr}\ns_mov_b32 s{s+1}, s{ptr+1}\ns_mov_b32 s{s+2}, {size}\ns_mov_b32 s{s+3}, 0x20000")

def kernel_begin(name):
    A(f".text\n.globl {name}\n.p2align 8\n.type {name},@function\n{name}:")

def kernel_desc(name, vgpr, sgpr):
    acc = (vgpr + 3) // 4 * 4
    A('.section .rodata,"a"\n.p2align 6')
    A(f".amdhsa_kernel {name}")
    A(f"  .amdhsa_next_free_vgpr {vgpr}\n  .amdhsa_next_free_sgpr {sgpr}\n  .amdhsa_accum_offset {acc}")
    A("  .amdhsa_group_segment_fixed_size 0\n  .amdhsa_kernarg_size 136\n  .amdhsa_user_sgpr_count 2")
    A("  .amdhsa_user_sgpr_kernarg_segment_ptr 1\n  .amdhsa_system_sgpr_workgroup_id_x 1")
    A("  .amdhsa_float_denorm_mode_32 3\n  .amdhsa_float_denorm_mode_16_64 3")
    A(".end_amdhsa_kernel")

LOG2E = 1.4426950408889634

STAMP_N = [0]
def stamp(idx, wave=0, t=(6, 7, 5)):
    if not STAMP: return
    STAMP_N[0] += 1
    lab = f"stamp_skip_{STAMP_N[0]}"
    a, b, z = t
    A(f"s_cmp_lg_u32 s32, {wave}\ns_cbranch_scc1 {lab}")
    A(f"s_memrealtime s[96:97]\ns_waitcnt lgkmcnt(0)\nv_mov_b32 v{a}, s96\nv_mov_b32 v{b}, s97")
    A(f"s_lshl_b32 s98, s2, 7\ns_add_u32 s98, s98, {STMP + idx*8}\ns_add_u32 s98, s98, s99\nv_mov_b32 v{z}, 0")
    A(f"buffer_store_dwordx2 v[{a}:{b}], v{z}, s[24:27], s98 offen")
    if idx <= 1:
        A(f"s_memtime s[96:97]\ns_waitcnt lgkmcnt(0)\ns_nop 1\nv_mov_b32 v{a}, s96\nv_mov_b32 v{b}, s97")
        A(f"buffer_store_dwordx2 v[{a}:{b}], v{z}, s[24:27], s98 offen offset:96")
    A(f"{lab}:")

K0_ROWWG = 512
K0_GRID = K0_ROWWG + 4

def wave_sum(v, tmp, s0):
    A(f"s_nop 1")
    A(f"v_add_f32_dpp {v}, {v}, {v} quad_perm:[1,0,3,2] row_mask:0xf bank_mask:0xf")
    A(f"s_nop 1")
    A(f"v_add_f32_dpp {v}, {v}, {v} quad_perm:[2,3,0,1] row_mask:0xf bank_mask:0xf")
    A(f"s_nop 1")
    A(f"v_add_f32_dpp {v}, {v}, {v} row_half_mirror row_mask:0xf bank_mask:0xf")
    A(f"s_nop 1")
    A(f"v_add_f32_dpp {v}, {v}, {v} row_mirror row_mask:0xf bank_mask:0xf")
    A(f"s_nop 1")
    A(f"v_readlane_b32 s{s0}, {v}, 0\nv_readlane_b32 s{s0+1}, {v}, 16\nv_readlane_b32 s{s0+2}, {v}, 32\nv_readlane_b32 s{s0+3}, {v}, 48")
    A(f"s_nop 1")
    A(f"v_mov_b32 {v}, s{s0}\nv_add_f32 {v}, s{s0+1}, {v}\nv_mov_b32 {tmp}, s{s0+2}\nv_add_f32 {tmp}, s{s0+3}, {tmp}\nv_add_f32 {v}, {v}, {tmp}")

def round_bf16(dst, src):
    A(f"v_cvt_pk_bf16_f32 {dst}, {src}, {src}\nv_and_b32 {dst}, 0xffff0000, {dst}")

def layernorm16(xin, xout, pk):
    A(f"v_add_f32 v60, v{xin}, v{xin+1}\nv_add_f32 v61, v{xin+2}, v{xin+3}")
    for i in range(4, 16, 2):
        A(f"v_add_f32 v60, v60, v{xin+i}\nv_add_f32 v61, v61, v{xin+i+1}")
    A("v_add_f32 v60, v60, v61")
    wave_sum("v60", "v61", 40)
    A(f"v_mul_f32 v60, {f32(1.0/1024)}, v60")
    A(f"v_sub_f32 v62, v{xin}, v60\nv_mul_f32 v63, v62, v62")
    A(f"v_sub_f32 v62, v{xin+1}, v60\nv_mul_f32 v64, v62, v62")
    for i in range(2, 16, 2):
        A(f"v_sub_f32 v62, v{xin+i}, v60\nv_fmac_f32 v63, v62, v62")
        A(f"v_sub_f32 v65, v{xin+i+1}, v60\nv_fmac_f32 v64, v65, v65")
    A("v_add_f32 v63, v63, v64")
    wave_sum("v63", "v61", 40)
    A(f"v_mul_f32 v63, {f32(1.0/1024)}, v63")
    round_bf16("v63", "v63")
    A(f"v_add_f32 v63, {f32(1e-5)}, v63")
    round_bf16("v63", "v63")
    A("v_sqrt_f32 v63, v63\ns_nop 0")
    round_bf16("v63", "v63")
    A("v_rcp_f32 v64, v63")
    round_bf16("v60", "v60")
    A("v_fma_f32 v65, -v63, v64, 1.0\nv_fma_f32 v64, v64, v65, v64")
    for i in range(0, 16, 2):
        A(f"v_sub_f32 v66, v{xin+i}, v60\nv_sub_f32 v67, v{xin+i+1}, v60")
        A(f"v_cvt_pk_bf16_f32 v66, v66, v67")
        A(f"v_and_b32 v67, 0xffff0000, v66\nv_lshlrev_b32 v66, 16, v66")
        A(f"v_mul_f32 v66, v66, v64\nv_mul_f32 v67, v67, v64")
        A(f"v_cvt_pk_bf16_f32 v{pk+i//2}, v66, v67")
        if xout is not None:
            A(f"v_lshlrev_b32 v{xout+i}, 16, v{pk+i//2}\nv_and_b32 v{xout+i+1}, 0xffff0000, v{pk+i//2}")

def gen_k0():
    kernel_begin("k0_kernel")
    A(f"s_cmp_ge_u32 s2, {K0_GRID}\ns_cbranch_scc1 K0_end")
    A(f"s_load_dwordx2 s[44:45], s[0:1], {KA['x']}")
    A(f"s_load_dwordx2 s[46:47], s[0:1], {KA['ws']}")
    A(f"s_load_dwordx4 s[56:59], s[0:1], {KA['bre']}")
    A(f"s_load_dwordx4 s[60:63], s[0:1], {KA['lre']}")
    A(f"s_load_dwordx2 s[64:65], s[0:1], {KA['ldt']}")
    A(f"s_load_dwordx2 s[66:67], s[0:1], {KA['w1']}")
    A("v_lshrrev_b32 v2, 6, v0\nv_and_b32 v1, 63, v0")
    A("v_readfirstlane_b32 s3, v2")
    A("s_waitcnt lgkmcnt(0)")
    srd(4, 44, 2048*1024*2)
    srd(8, 46, WS_SIZE)
    srd(24, 56, 2097152)
    srd(28, 58, 2097152)
    srd(32, 66, 14680064)
    A(f"s_cmp_ge_u32 s2, {K0_ROWWG}\ns_cbranch_scc1 K0_coef")
    A("s_lshl_b32 s36, s2, 2\ns_add_u32 s36, s36, s3")
    A("s_lshl_b32 s37, s36, 11")
    A("v_lshlrev_b32 v2, 4, v1")
    A("buffer_load_dwordx4 v[4:7], v2, s[4:7], s37 offen")
    A("buffer_load_dwordx4 v[8:11], v2, s[4:7], s37 offen offset:1024")
    ntouch = 0
    if K0_T & 1:
        A("s_and_b32 s38, s3, 1\ns_cmp_eq_u32 s38, 1\ns_cselect_b32 s24, s28, s24\ns_cselect_b32 s25, s29, s25")
        A("v_and_b32 v96, 15, v1\nv_lshlrev_b32 v96, 7, v96")
        A("s_lshr_b32 s38, s3, 1\ns_lshl_b32 s38, s38, 11\ns_lshl_b32 s39, s2, 12\ns_add_u32 s39, s39, s38")
        A("buffer_load_dword v91, v96, s[24:27], s39 offen"); ntouch += 1
    if K0_W1:
        A(f"v_lshlrev_b32 v90, 7, v0\nv_min_u32 v90, {K0_W1-128}, v90")
        A(f"s_mul_i32 s39, s2, {K0_W1}\nbuffer_load_dword v91, v90, s[32:35], s39 offen"); ntouch += 1
    A("s_cmp_ge_u32 s2, 192\ns_cbranch_scc1 K0_nosent")
    A(f"s_cmp_lt_u32 s2, 128\ns_cselect_b32 s38, {SENT}, 0\ns_cselect_b32 s39, 0, {FLAG - 128*1024 - AGG}\ns_add_u32 s39, s39, {AGG}")
    A(f"v_lshlrev_b32 v92, 2, v0\nv_mov_b32 v93, s38\ns_lshl_b32 s38, s2, 10\ns_add_u32 s39, s39, s38")
    A("buffer_store_dword v93, v92, s[8:11], s39 offen")
    A(f"s_waitcnt vmcnt({ntouch+1})\ns_branch K0_go")
    A(f"K0_nosent:\ns_waitcnt vmcnt({ntouch})")
    A("K0_go:")
    for i in range(8):
        A(f"v_lshlrev_b32 v{20+2*i}, 16, v{4+i}\nv_and_b32 v{21+2*i}, 0xffff0000, v{4+i}")
    layernorm16(20, 36, 68)
    A("s_bfe_u32 s38, s36, 0x30002\ns_lshl_b32 s38, s38, 4\ns_bfe_u32 s39, s36, 0x20005\ns_lshl_b32 s39, s39, 2\ns_add_u32 s38, s38, s39")
    A("s_and_b32 s39, s36, 0xffffff83\ns_add_u32 s38, s38, s39\ns_lshl_b32 s38, s38, 11")
    if XN: A(f"s_add_u32 s38, s38, {XN}")
    A("buffer_store_dwordx4 v[68:71], v2, s[8:11], s38 offen")
    A("buffer_store_dwordx4 v[72:75], v2, s[8:11], s38 offen offset:1024")
    A(f"v_mov_b32 v94, v60\nv_mov_b32 v95, v64\nv_mov_b32 v97, 0\ns_lshl_b32 s38, s36, 3\ns_add_u32 s38, s38, {STAT}")
    A("s_mov_b64 s[48:49], exec\ns_mov_b64 exec, 1")
    A("buffer_store_dwordx2 v[94:95], v97, s[8:11], s38 offen")
    A("s_mov_b64 exec, s[48:49]")
    layernorm16(36, None, 76)
    A(f"s_add_u32 s39, s37, {H2}")
    A("buffer_store_dwordx4 v[76:79], v2, s[8:11], s39 offen")
    A("buffer_store_dwordx4 v[80:83], v2, s[8:11], s39 offen offset:1024")
    A("s_waitcnt vmcnt(0)\ns_endpgm")
    A("K0_coef:")
    srd(4, 60, 2048)
    srd(12, 62, 2048)
    srd(16, 64, 2048)
    A(f"s_sub_u32 s36, s2, {K0_ROWWG}\ns_lshl_b32 s36, s36, 8")
    A("v_add_u32 v2, s36, v0\nv_lshlrev_b32 v3, 1, v2")
    A("buffer_load_ushort v4, v3, s[4:7], 0 offen\nbuffer_load_ushort v5, v3, s[12:15], 0 offen\nbuffer_load_ushort v6, v3, s[16:19], 0 offen")
    A("s_waitcnt vmcnt(0)")
    A("v_lshlrev_b32 v4, 16, v4\nv_lshlrev_b32 v5, 16, v5\nv_lshlrev_b32 v6, 16, v6")
    A(f"v_mul_f32 v6, {f32(LOG2E)}, v6\nv_exp_f32 v6, v6\ns_nop 0")
    round_bf16("v6", "v6")
    A("v_mul_f32 v7, v6, v4\nv_mul_f32 v8, v6, v5")
    A(f"v_mul_f32 v9, {f32(LOG2E)}, v7\nv_exp_f32 v9, v9")
    A(f"v_mul_f32 v10, {f32(0.15915494309189535)}, v8\nv_fract_f32 v10, v10")
    A("v_cos_f32 v11, v10\nv_sin_f32 v12, v10\ns_nop 0")
    A("v_mul_f32 v20, v9, v11\nv_mul_f32 v21, v9, v12")
    A("v_add_f32 v13, -1.0, v20")
    A("v_mul_f32 v14, v4, v4\nv_fmac_f32 v14, v5, v5\nv_rcp_f32 v15, v14\ns_nop 0")
    A("v_fma_f32 v16, -v14, v15, 1.0\nv_fma_f32 v15, v15, v16, v15\nv_add_f32 v15, v15, v15")
    A("v_mul_f32 v22, v13, v4\nv_fmac_f32 v22, v21, v5\nv_mul_f32 v22, v22, v15")
    A("v_mul_f32 v23, v21, v4\nv_fma_f32 v23, -v13, v5, v23\nv_mul_f32 v23, v23, v15")
    A("v_mov_b32 v24, v20\nv_mov_b32 v25, v21")
    def csq(r, i):
        A(f"v_mul_f32 v16, v{r}, v{r}\nv_fma_f32 v16, -v{i}, v{i}, v16\nv_mul_f32 v17, v{r}, v{i}\nv_add_f32 v{i}, v17, v17\nv_mov_b32 v{r}, v16")
    for _ in range(5): csq(24, 25)
    A("v_mov_b32 v26, v24\nv_mov_b32 v27, v25")
    for _ in range(2): csq(26, 27)
    A(f"v_lshlrev_b32 v3, 5, v2\ns_mov_b32 s37, {COEF}")
    A("buffer_store_dwordx4 v[20:23], v3, s[8:11], s37 offen")
    A("buffer_store_dwordx4 v[24:27], v3, s[8:11], s37 offen offset:16")
    A("K0_end:\ns_endpgm")

FR = 32
ACC = 128
AADDR = 8
BADDR = 12

class Core:
    def __init__(self, tA, tB, MB, NS):
        self.tA, self.tB, self.MB, self.NS = tA, tB, MB, NS
        self.AB = MB*32*128
        self.SS = self.AB + 16384
        self.FS = (MB + 4)*4
        self.na = 3 if tA == 'T224' else 2
        self.nb = 4 if tB == 'T128' else 2

    def addr_setup(self, sq=None):
        MB = self.MB
        A("v_and_b32 v2, 15, v1\nv_lshrrev_b32 v3, 4, v1")
        if self.tA == 'N' or self.tB == 'N':
            A("v_lshrrev_b32 v4, 1, v2\nv_xor_b32 v4, v4, v3\nv_lshlrev_b32 v4, 4, v4\nv_lshlrev_b32 v5, 7, v2\nv_add_u32 v4, v4, v5")
        if self.tA == 'N':
            A(f"s_mul_i32 s90, s60, {MB*16*128}\nv_add_u32 v{AADDR}, s90, v4\nv_xor_b32 v{AADDR+1}, 64, v{AADDR}")
        if self.tB == 'N':
            A(f"s_lshl_b32 s90, s61, 13\ns_add_u32 s90, s90, {self.AB}\nv_add_u32 v{BADDR}, s90, v4\nv_xor_b32 v{BADDR+1}, 64, v{BADDR}")
        if self.tA != 'N' or self.tB != 'N':
            A("v_lshrrev_b32 v5, 2, v1\nv_and_b32 v6, 3, v1\nv_lshlrev_b32 v6, 3, v6")
        if self.tA == 'T224':
            A("v_mul_u32_u24 v7, 448, v5\nv_add_u32 v7, v7, v6")
            A("v_and_b32 v4, 1, v3\nv_lshlrev_b32 v4, 5, v4")
            A("s_lshl_b32 s90, s60, 8\nv_add_u32 v2, s90, v7")
            A(f"v_add_u32 v{AADDR}, v2, v4")
            A(f"v_sub_u32 v{AADDR+1}, v2, v4\nv_add_u32 v{AADDR+1}, 32, v{AADDR+1}")
            A("s_lshl_b32 s90, s60, 5\ns_add_u32 s90, s90, 192\nv_xor_b32 v4, s90, v4")
            A(f"v_add_u32 v{AADDR+2}, v7, v4")
        if self.tB == 'T128':
            A("v_and_b32 v4, 7, v5\ns_lshl_b32 s90, s61, 2")
            if sq is not None: A(f"s_add_u32 s90, s90, s{sq}")
            A("v_xor_b32 v4, s90, v4\nv_lshlrev_b32 v4, 5, v4\nv_lshlrev_b32 v7, 8, v5\nv_add_u32 v7, v7, v6")
            A(f"v_add_u32 v7, {self.AB}, v7")
            for nb in range(4):
                A(f"v_xor_b32 v2, {32*nb}, v4\nv_add_u32 v{BADDR+nb}, v7, v2")

    def reads(self, kk):
        fs = FR + kk*self.FS
        MB = self.MB
        ra, rb = [], []
        for mb in range(MB):
            d = fs + 4*mb
            if self.tA == 'N':
                ra.append(f"ds_read_b128 v[{d}:{d+3}], v{AADDR+kk} offset:{2048*mb}")
            else:
                for rd in range(2):
                    if mb < 6: a, o = AADDR + (mb & 1), 64*(mb >> 1)
                    else: a, o = AADDR + 2, 0
                    ra.append(f"ds_read_b64_tr_b16 v[{d+2*rd}:{d+2*rd+1}], v{a} offset:{o + rd*7168 + kk*14336}")
        for nb in range(4):
            d = fs + 4*MB + 4*nb
            if self.tB == 'N':
                rb.append(f"ds_read_b128 v[{d}:{d+3}], v{BADDR+kk} offset:{2048*nb}")
            else:
                for rd in range(2):
                    rb.append(f"ds_read_b64_tr_b16 v[{d+2*rd}:{d+2*rd+1}], v{BADDR+nb} offset:{rd*4096 + kk*8192}")
        pa = len(ra)//MB
        return ra[:pa] + rb + ra[pa:]

    def mfmas(self, kk):
        fs = FR + kk*self.FS
        MB = self.MB
        r = []
        for mb in range(MB):
            order = range(4) if mb % 2 == 0 else range(3, -1, -1)
            for nb in order:
                d = ACC + (mb*4+nb)*4
                r.append(f"v_mfma_f32_16x16x32_bf16 v[{d}:{d+3}], v[{fs+4*mb}:{fs+4*mb+3}], v[{fs+4*MB+4*nb}:{fs+4*MB+4*nb+3}], v[{d}:{d+3}]")
        return r

    def substep(self, kk, rd, bar, upd):
        mf = self.mfmas(kk)
        A("s_waitcnt lgkmcnt(0)")
        start = BAR_AT if bar else 1
        nslots = len(mf) - start - 5
        sched = {}
        for i, x in enumerate(rd):
            sl = start + (i*nslots)//max(len(rd), 1)
            sched.setdefault(sl, []).append(x)
        for m, x in enumerate(mf):
            if m == start and bar: A("s_barrier")
            for y in sched.get(m, []): A(y)
            A(x)
            if m == 0 and upd:
                regs = [AADDR+i for i in range(self.na)] + [BADDR+i for i in range(self.nb)]
                A(f"s_add_u32 s93, s93, 1\ns_cmp_eq_u32 s93, {self.NS}\ns_cselect_b32 s94, {(-(self.NS-1)*self.SS) & 0xffffffff}, s95\ns_cselect_b32 s93, 0, s93")
                self._upd = regs
            elif upd and m in (1, 2):
                half = (len(self._upd)+1)//2
                for r in (self._upd[:half] if m == 1 else self._upd[half:]):
                    A(f"v_add_u32 v{r}, s94, v{r}")

    def loop(self, tag, nsteps):
        A(f"s_mov_b32 s93, 0\ns_mov_b32 s95, {self.SS}")
        A("s_barrier")
        for x in self.reads(0): A(x)
        A(f"s_mov_b32 s92, {nsteps-1}")
        A(f"{tag}_loop:")
        self.substep(0, self.reads(1), False, False)
        self.substep(1, self.reads(0), True, True)
        A(f"s_sub_u32 s92, s92, 1\ns_cmp_lg_u32 s92, 0\ns_cbranch_scc1 {tag}_loop")
        self.substep(0, self.reads(1), False, False)
        self.substep(1, [], False, False)

def zero_regs(base, n):
    for i in range(n): A(f"v_mov_b32 v{base+i}, 0")

def voff_N(pitch, dst):
    A("v_lshrrev_b32 v2, 3, v1\nv_and_b32 v3, 7, v1\nv_lshrrev_b32 v4, 1, v2\nv_xor_b32 v3, v3, v4")
    A(f"s_mov_b32 s90, {pitch}\nv_mul_lo_u32 v2, v2, s90\nv_lshlrev_b32 v3, 4, v3")
    A(f"v_add_u32 v{dst}, v2, v3\nv_xor_b32 v3, 64, v3\nv_add_u32 v{dst+1}, v2, v3")

def voff_T128(pitch, dst):
    A("v_lshrrev_b32 v2, 4, v1\nv_and_b32 v3, 15, v1\nv_lshlrev_b32 v4, 1, v2\nv_xor_b32 v3, v3, v4")
    A(f"s_mov_b32 s90, {pitch}\nv_mul_lo_u32 v2, v2, s90\nv_lshlrev_b32 v3, 4, v3")
    A(f"v_add_u32 v{dst}, v2, v3\nv_xor_b32 v3, 128, v3\nv_add_u32 v{dst+1}, v2, v3")

def voff_T224(pitch, dst):
    A(f"s_mov_b32 s90, {pitch}")
    for j in range(7):
        A(f"v_add_u32 v2, {64*j}, v1\nv_mul_u32_u24 v3, 2341, v2\nv_lshrrev_b32 v3, 16, v3")
        A("v_mul_u32_u24 v4, 28, v3\nv_sub_u32 v2, v2, v4")
        A("v_bfe_u32 v4, v3, 2, 1\nv_lshlrev_b32 v4, 1, v4\nv_xor_b32 v2, v2, v4\nv_lshlrev_b32 v2, 4, v2")
        A(f"v_mul_lo_u32 v3, v3, s90\nv_add_u32 v{dst+j}, v3, v2")

def producer(tag, core, items, nsteps, setup_stage):
    NS, SS = core.NS, core.SS
    cnt = len(items)
    def issue():
        setup_stage()
        prev = None
        for (sr, v, sb, ro, lo) in items:
            if prev is None: A(f"s_add_u32 m0, s80, {lo}")
            else: A(f"s_add_u32 m0, m0, {lo-prev}")
            prev = lo
            A(f"s_add_u32 s83, s{sb}, {ro}")
            A(f"buffer_load_dwordx4 v{v}, s[{sr}:{sr+3}], s83 offen lds")
        A(f"s_add_u32 s80, s80, {SS}\ns_cmp_eq_u32 s80, {NS*SS}\ns_cselect_b32 s80, 0, s80")
    A("s_mov_b32 s80, 0\ns_mov_b32 s87, 0")
    for i in range(NS):
        if (i+1)*cnt > 63: A(f"s_waitcnt vmcnt({63-cnt})")
        issue()
    A(f"s_waitcnt vmcnt({(NS-1)*cnt})\ns_barrier")
    A(f"s_mov_b32 s84, {nsteps-NS}")
    A(f"{tag}_loop:")
    A(f"s_waitcnt vmcnt({(NS-2)*cnt})\ns_barrier")
    issue()
    A(f"s_sub_u32 s84, s84, 1\ns_cmp_lg_u32 s84, 0\ns_cbranch_scc1 {tag}_loop")
    for r in range(NS-2, -1, -1):
        A(f"s_waitcnt vmcnt({r*cnt})\ns_barrier")

def rot_index(n):
    n4 = n // 4 * 4
    if SKEW:
        A("s_add_u32 s85, s87, s88\ns_and_b32 s85, s85, 3\ns_andn2_b32 s83, s87, 3\ns_or_b32 s85, s85, s83")
        if n4 != n: A(f"s_cmp_lt_u32 s87, {n4}\ns_cselect_b32 s85, s85, s87")
    else:
        A("s_mov_b32 s85, s87")
    A("s_add_u32 s87, s87, 1")

def cfma(dr, di, ar, ai, xr, xi, yr, yi):
    A(f"v_fma_f32 v{dr}, v{ar}, v{xr}, v{yr}\nv_fma_f32 v{di}, v{ar}, v{xi}, v{yi}")
    A(f"v_fma_f32 v{dr}, -v{ai}, v{xi}, v{dr}\nv_fma_f32 v{di}, v{ai}, v{xr}, v{di}")

C1 = Core('N', 'N', 8, 3)
C3 = Core('T224', 'T128', 7, 3)
K1_LDS = max(C1.SS*C1.NS, C3.SS*C3.NS)

def gen_k1():
    kernel_begin("k1_kernel")
    A("s_cmp_ge_u32 s2, 256\ns_cbranch_scc1 K1_end")
    A(f"s_load_dwordx4 s[44:47], s[0:1], {KA['bre']}")
    A(f"s_load_dwordx4 s[48:51], s[0:1], {KA['w1']}")
    A(f"s_load_dwordx2 s[52:53], s[0:1], {KA['ws']}")
    A(f"s_load_dwordx4 s[64:67], s[0:1], {KA['cre']}")
    A(f"s_load_dwordx2 s[68:69], s[0:1], {KA['w2']}")
    A("v_lshrrev_b32 v2, 6, v0\nv_and_b32 v1, 63, v0")
    A("v_readfirstlane_b32 s32, v2")
    A("s_and_b32 s33, s2, 7\ns_lshr_b32 s34, s2, 3")
    A("s_and_b32 s35, s34, 3\ns_bfe_u32 s36, s34, 0x20002")
    A("s_add_u32 s88, s35, s36")
    A("s_and_b32 s37, s33, 1\ns_lshl_b32 s37, s37, 2\ns_add_u32 s39, s37, s35")
    A("s_lshr_b32 s37, s33, 1\ns_lshl_b32 s37, s37, 2\ns_add_u32 s40, s37, s36")
    A("s_and_b32 s37, s33, 3\ns_lshl_b32 s37, s37, 2\ns_add_u32 s41, s37, s35")
    A("s_lshr_b32 s37, s33, 2\ns_lshl_b32 s37, s37, 2\ns_add_u32 s42, s37, s36")
    A("s_mov_b32 s99, 0")
    A("s_lshr_b32 s60, s32, 1\ns_and_b32 s61, s32, 1")
    A("s_waitcnt lgkmcnt(0)")
    srd(8, 44, 2097152)
    srd(12, 46, 2097152)
    srd(16, 48, 14680064)
    srd(24, 52, WS_SIZE)
    srd(28, 50, 7168)
    stamp(0)
    A("s_cmp_ge_u32 s34, 16\ns_cbranch_scc1 K1_g1")
    A("s_cmp_ge_u32 s32, 4\ns_cbranch_scc1 K1_g3prod")
    A("s_mul_i32 s62, s41, 448")
    A("s_lshl_b32 s63, s60, 8\ns_add_u32 s63, s63, s62")
    A("s_lshl_b32 s70, s60, 5\ns_add_u32 s70, s70, s62\ns_add_u32 s70, s70, 192")
    A("v_lshrrev_b32 v16, 4, v1\nv_lshlrev_b32 v17, 3, v16")
    for lb in range(6):
        A(f"buffer_load_dwordx2 v[{240+2*lb}:{241+2*lb}], v17, s[28:31], s63 offen offset:{32*lb}")
    A("buffer_load_dwordx2 v[252:253], v17, s[28:31], s70 offen")
    C3.addr_setup()
    zero_regs(ACC, 112)
    C3.loop("K1_g3", 32)
    stamp(1)
    A("v_and_b32 v18, 15, v1\nv_lshlrev_b32 v18, 11, v18\nv_lshlrev_b32 v19, 4, v16\nv_add_u32 v18, v18, v19")
    A("s_lshl_b32 s71, s60, 3\nv_add_u32 v19, s71, v18")
    A("s_lshl_b32 s71, s42, 18\ns_lshl_b32 s72, s61, 17\ns_add_u32 s71, s71, s72")
    A(f"s_add_u32 s71, s71, {U}")
    A("s_mul_i32 s72, s41, 7\ns_lshl_b32 s73, s60, 2\ns_add_u32 s73, s73, s72")
    for pr in range(4):
        if pr < 3: A(f"s_add_u32 s74, s73, {pr}")
        else: A("s_add_u32 s74, s72, 3")
        A(f"s_lshr_b32 s75, s74, 5\ns_lshl_b32 s75, s75, 21\ns_and_b32 s74, s74, 31\ns_lshl_b32 s74, s74, 6\ns_add_u32 s74, s74, s75\ns_add_u32 s{76+pr}, s74, s71")
    GC0 = -2.0 * 0.7978845608028654 * LOG2E
    GC1 = GC0 * 0.044715
    A(f"v_mov_b32 v20, {f32(GC0)}\nv_mov_b32 v21, {f32(GC0)}\nv_mov_b32 v22, {f32(GC1)}\nv_mov_b32 v23, {f32(GC1)}\nv_mov_b32 v24, 1.0\nv_mov_b32 v25, 1.0")
    A("s_nop 7\ns_waitcnt vmcnt(0)")
    for lb in range(7):
        for h in range(2):
            A(f"v_lshlrev_b32 v{32+4*lb+2*h}, 16, v{240+2*lb+h}\nv_and_b32 v{33+4*lb+2*h}, 0xffff0000, v{240+2*lb+h}")
    def gelu_pairs(prs):
        for (r, b, t, d) in prs: A(f"v_cvt_pk_bf16_f32 v{t+2}, v{r}, v{r+1}")
        for (r, b, t, d) in prs: A(f"v_lshlrev_b32 v{t}, 16, v{t+2}\nv_and_b32 v{t+1}, 0xffff0000, v{t+2}")
        for (r, b, t, d) in prs: A(f"v_pk_add_f32 v[{t}:{t+1}], v[{t}:{t+1}], v[{b}:{b+1}]")
        for (r, b, t, d) in prs: A(f"v_cvt_pk_bf16_f32 v{t+2}, v{t}, v{t+1}")
        for (r, b, t, d) in prs: A(f"v_lshlrev_b32 v{t}, 16, v{t+2}\nv_and_b32 v{t+1}, 0xffff0000, v{t+2}")
        for (r, b, t, d) in prs: A(f"v_pk_mul_f32 v[{t+2}:{t+3}], v[{t}:{t+1}], v[{t}:{t+1}]")
        for (r, b, t, d) in prs: A(f"v_pk_fma_f32 v[{t+2}:{t+3}], v[{t+2}:{t+3}], v[22:23], v[20:21]")
        for (r, b, t, d) in prs: A(f"v_pk_mul_f32 v[{t+2}:{t+3}], v[{t+2}:{t+3}], v[{t}:{t+1}]")
        for (r, b, t, d) in prs: A(f"v_exp_f32 v{t+2}, v{t+2}\nv_exp_f32 v{t+3}, v{t+3}")
        for (r, b, t, d) in prs: A(f"v_pk_add_f32 v[{t+2}:{t+3}], v[{t+2}:{t+3}], v[24:25]")
        for (r, b, t, d) in prs: A(f"v_rcp_f32 v{t+2}, v{t+2}\nv_rcp_f32 v{t+3}, v{t+3}")
        for (r, b, t, d) in prs: A(f"v_pk_mul_f32 v[{t}:{t+1}], v[{t}:{t+1}], v[{t+2}:{t+3}]")
        for (r, b, t, d) in prs: A(f"v_cvt_pk_bf16_f32 v{d}, v{t}, v{t+1}")
    TB = 64
    k = 0
    for nb in range(4):
        for pr in range(3):
            st = 80 + (k % 8)*4; k += 1
            prs = []
            for e in range(2):
                lb = 2*pr + e
                for h in range(2):
                    prs.append((ACC + (lb*4+nb)*4 + 2*h, 32 + 4*lb + 2*h, TB + (2*e+h)*4, st + 2*e + h))
            gelu_pairs(prs)
            A(f"s_add_u32 s74, s{76+pr}, {nb*16*2048}")
            A(f"buffer_store_dwordx4 v[{st}:{st+3}], v18, s[24:27], s74 offen")
    for nb2 in range(2):
        st = 80 + (k % 8)*4; k += 1
        prs = []
        for e in range(2):
            nb = 2*nb2 + e
            for h in range(2):
                prs.append((ACC + (6*4+nb)*4 + 2*h, 32 + 4*6 + 2*h, TB + (2*e+h)*4, st + 2*e + h))
        gelu_pairs(prs)
        for e in range(2):
            A(f"s_add_u32 s74, s79, {(2*nb2+e)*16*2048}")
            A(f"buffer_store_dwordx2 v[{st+2*e}:{st+2*e+1}], v19, s[24:27], s74 offen")
    stamp(2)
    A("s_endpgm")
    A("K1_g3prod:")
    voff_T224(7168, 8)
    voff_T128(2048, 16)
    A("s_mul_i32 s86, s41, 448")
    A(f"s_lshl_b32 s89, s42, 8\ns_add_u32 s89, s89, {H2}")
    itA = [(16, 8 + j % 7, 81, (j//7)*16*7168, j*1024) for j in range(28)]
    itB = [(24, 16 + (j & 1), 82, j*4*2048, C3.AB + j*1024) for j in range(16)]
    def st3():
        rot_index(32)
        A(f"s_mul_i32 s81, s85, {64*7168}\ns_add_u32 s81, s81, s86\ns_lshl_b32 s82, s85, 17\ns_add_u32 s82, s82, s89")
    allit = itA + itB
    A("s_cmp_eq_u32 s32, 5\ns_cbranch_scc1 K1_g3p1")
    producer("K1_g3p0", C3, allit[:22], 32, st3)
    A("s_endpgm\nK1_g3p1:")
    producer("K1_g3p1", C3, allit[22:], 32, st3)
    A("s_endpgm")
    A("K1_g1:")
    A("s_cmp_ge_u32 s32, 4\ns_cbranch_scc1 K1_g1prod")
    A("s_lshl_b32 s62, s40, 6\ns_lshl_b32 s63, s61, 5\ns_add_u32 s62, s62, s63")
    A(f"v_and_b32 v2, 15, v1\nv_lshlrev_b32 v2, 5, v2\ns_lshl_b32 s63, s62, 5\ns_add_u32 s63, s63, {COEF}")
    A("buffer_load_dwordx4 v[16:19], v2, s[24:27], s63 offen\nbuffer_load_dwordx4 v[20:23], v2, s[24:27], s63 offen offset:16")
    A("buffer_load_dwordx4 v[24:27], v2, s[24:27], s63 offen offset:512\nbuffer_load_dwordx4 v[28:31], v2, s[24:27], s63 offen offset:528")
    C1.addr_setup()
    zero_regs(ACC, 128)
    C1.loop("K1_g1", 16)
    stamp(1)
    A("s_nop 7\ns_waitcnt vmcnt(0)")
    CO = [16, 24]
    zre = lambda ch, t: ACC + ((t//4)*4 + 2*ch)*4 + t % 4
    zim = lambda ch, t: ACC + ((t//4)*4 + 2*ch + 1)*4 + t % 4
    cur = [(zre(0, 0), zim(0, 0)), (zre(1, 0), zim(1, 0))]
    bufs = [[(32, 33), (34, 35)], [(36, 37), (38, 39)]]
    for t in range(1, 32):
        for ch in range(2):
            n = bufs[ch][t % 2]; c = cur[ch]; a = CO[ch]
            A(f"v_fma_f32 v{n[0]}, v{a}, v{c[0]}, v{zre(ch,t)}\nv_fma_f32 v{n[1]}, v{a}, v{c[1]}, v{zim(ch,t)}")
        for ch in range(2):
            n = bufs[ch][t % 2]; c = cur[ch]; a = CO[ch]
            A(f"v_fma_f32 v{n[0]}, -v{a+1}, v{c[1]}, v{n[0]}\nv_fma_f32 v{n[1]}, v{a+1}, v{c[0]}, v{n[1]}")
            cur[ch] = n
    A("v_and_b32 v2, 15, v1\nv_lshlrev_b32 v2, 2, v2\nv_lshrrev_b32 v3, 4, v1")
    for ch in range(2):
        for g in range(4):
            for h in range(2):
                A(f"ds_bpermute_b32 v{40+ch*8+2*g+h}, v2, v{cur[ch][h]} offset:{64*g}")
    for ch in range(2):
        a = CO[ch] + 4; d = 56 + ch*4
        A(f"v_mul_f32 v{d}, v{a}, v{a}\nv_fma_f32 v{d}, -v{a+1}, v{a+1}, v{d}\nv_mul_f32 v{d+1}, v{a}, v{a+1}\nv_add_f32 v{d+1}, v{d+1}, v{d+1}")
        A(f"v_mul_f32 v{d+2}, v{d}, v{a}\nv_fma_f32 v{d+2}, -v{d+1}, v{a+1}, v{d+2}\nv_mul_f32 v{d+3}, v{d}, v{a+1}\nv_fma_f32 v{d+3}, v{d+1}, v{a}, v{d+3}")
    A("s_waitcnt lgkmcnt(0)")
    for ch in range(2):
        e = 40 + ch*8; a = CO[ch] + 4
        cfma(e+2, e+3, a, a+1, e, e+1, e+2, e+3)
        cfma(e+4, e+5, a, a+1, e+2, e+3, e+4, e+5)
        cfma(e+6, e+7, a, a+1, e+4, e+5, e+6, e+7)
    A("v_mov_b32 v4, 0x7fc00000")
    for i, r in enumerate((46, 47, 54, 55)):
        A(f"v_cmp_eq_u32 vcc, -1, v{r}\ns_nop 1\nv_cndmask_b32 v{64+i}, v{r}, v4, vcc")
    A("v_lshlrev_b32 v8, 2, v2")
    A("s_lshl_b32 s70, s39, 1\ns_add_u32 s70, s70, s60")
    A(f"s_lshl_b32 s71, s62, 3\ns_add_u32 s71, s71, {AGG}")
    A("s_lshl_b32 s72, s70, 13\ns_add_u32 s72, s72, s71")
    A("s_mov_b64 s[74:75], exec\ns_mov_b64 exec, 0xffff")
    A("buffer_store_dwordx4 v[64:67], v8, s[24:27], s72 offen sc1")
    A("s_mov_b64 exec, s[74:75]")
    A("v_mov_b32 v32, 0\nv_mov_b32 v33, 0\nv_mov_b32 v34, 0\nv_mov_b32 v35, 0\nv_mov_b32 v36, 1.0\nv_mov_b32 v37, 0\nv_mov_b32 v38, 1.0\nv_mov_b32 v39, 0")
    for g in range(1, 4):
        A(f"v_cmp_eq_u32 vcc, {g}, v3\ns_nop 1")
        for ch in range(2):
            pr = 40 + ch*8 + 2*(g-1)
            mr = CO[ch] + 4 if g == 1 else 56 + ch*4 + 2*(g-2)
            A(f"v_cndmask_b32 v{32+2*ch}, v{32+2*ch}, v{pr}, vcc\nv_cndmask_b32 v{33+2*ch}, v{33+2*ch}, v{pr+1}, vcc")
            A(f"v_cndmask_b32 v{36+2*ch}, v{36+2*ch}, v{mr}, vcc\nv_cndmask_b32 v{37+2*ch}, v{37+2*ch}, v{mr+1}, vcc")
    A("v_mov_b32 v40, 0\nv_mov_b32 v41, 0\nv_mov_b32 v42, 0\nv_mov_b32 v43, 0")
    A("s_cmp_eq_u32 s70, 0\ns_cbranch_scc1 K1_nocarry")
    A("s_mov_b32 s73, 0x40000")
    A("K1_retry:")
    A("s_mov_b32 s72, s71")
    LB = 64
    for c in range(15):
        A(f"buffer_load_dwordx4 v[{LB+4*c}:{LB+4*c+3}], v8, s[24:27], s72 offen sc1")
        if c < 14: A("s_add_u32 s72, s72, 8192")
    A("s_waitcnt vmcnt(0)")
    A("v_mov_b32 v40, 0\nv_mov_b32 v41, 0\nv_mov_b32 v42, 0\nv_mov_b32 v43, 0\ns_mov_b64 s[76:77], 0")
    for c in range(15):
        for h in range(4):
            A(f"v_cmp_eq_u32 vcc, -1, v{LB+4*c+h}\ns_or_b64 s[76:77], s[76:77], vcc")
        for ch in range(2):
            cfma(44+2*ch, 45+2*ch, CO[ch]+6, CO[ch]+7, 40+2*ch, 41+2*ch, LB+4*c+2*ch, LB+4*c+2*ch+1)
        A("v_mov_b32 v40, v44\nv_mov_b32 v41, v45\nv_mov_b32 v42, v46\nv_mov_b32 v43, v47")
        if c < 14: A(f"s_cmp_eq_u32 s70, {c+1}\ns_cbranch_scc1 K1_gotall")
    A("K1_gotall:")
    A("s_cmp_eq_u64 s[76:77], 0\ns_cbranch_scc1 K1_nocarry")
    A("s_sleep 8\ns_sub_u32 s73, s73, 1\ns_cmp_lg_u32 s73, 0\ns_cbranch_scc1 K1_retry")
    A("K1_nocarry:")
    stamp(2)
    for ch in range(2):
        cfma(44+4*ch, 45+4*ch, 36+2*ch, 37+2*ch, 40+2*ch, 41+2*ch, 32+2*ch, 33+2*ch)
    A("v_and_b32 v2, 15, v1\nv_bfe_u32 v4, v2, 2, 1\nv_lshlrev_b32 v4, 4, v4\nv_lshrrev_b32 v5, 3, v2\nv_lshlrev_b32 v5, 2, v5\nv_add_u32 v4, v4, v5")
    A("v_and_b32 v2, 3, v2\nv_add_u32 v4, v4, v2\nv_lshlrev_b32 v4, 12, v4\nv_lshlrev_b32 v5, 6, v3\nv_add_u32 v9, v4, v5")
    A(f"s_lshl_b32 s72, s62, 12\ns_lshl_b32 s73, s70, 8\ns_add_u32 s72, s72, s73\ns_add_u32 s72, s72, {HT}")
    A(f"s_add_u32 s73, s72, {1024*4096}\ns_add_u32 s74, s72, {8*4096}\ns_add_u32 s75, s73, {8*4096}")
    cur = [(44, 45), (48, 49)]; nxt = [(46, 47), (50, 51)]
    for q in range(4):
        stg = 64 + (q % 2)*16
        for e in range(4):
            for u in range(2):
                t = q*8 + 2*e + u
                for ch in range(2):
                    a = CO[ch]; n = nxt[ch]; c = cur[ch]
                    A(f"v_fma_f32 v{n[0]}, v{a}, v{c[0]}, v{zre(ch,t)}\nv_fma_f32 v{n[1]}, v{a}, v{c[1]}, v{zim(ch,t)}")
                for ch in range(2):
                    a = CO[ch]; n = nxt[ch]; c = cur[ch]
                    A(f"v_fma_f32 v{n[0]}, -v{a+1}, v{c[1]}, v{n[0]}\nv_fma_f32 v{n[1]}, v{a+1}, v{c[0]}, v{n[1]}")
                    cur[ch], nxt[ch] = n, c
                for ch in range(2):
                    a = CO[ch]; c = cur[ch]; o = 52 + ch*4 + 2*u
                    A(f"v_mul_f32 v{o}, v{a+2}, v{c[0]}\nv_mul_f32 v{o+1}, -v{a+2}, v{c[1]}")
                for ch in range(2):
                    a = CO[ch]; c = cur[ch]; o = 52 + ch*4 + 2*u
                    A(f"v_fma_f32 v{o}, -v{a+3}, v{c[1]}, v{o}\nv_fma_f32 v{o+1}, -v{a+3}, v{c[0]}, v{o+1}")
            for ch in range(2):
                o = 52 + ch*4
                A(f"v_cvt_pk_bf16_f32 v{stg+ch*8+e}, v{o}, v{o+2}\nv_cvt_pk_bf16_f32 v{stg+ch*8+4+e}, v{o+1}, v{o+3}")
        for i, sr in enumerate((72, 73, 74, 75)):
            A(f"buffer_store_dwordx4 v[{stg+4*i}:{stg+4*i+3}], v9, s[24:27], s{sr} offen offset:{16*q}")
    stamp(3)
    A("s_endpgm")
    A("K1_g1prod:")
    voff_N(2048, 8)
    A(f"s_lshl_b32 s86, s39, 19")
    if XN: A(f"s_add_u32 s86, s86, {XN}")
    A("s_lshl_b32 s89, s40, 17")
    itA = [(24, 8 + (j & 1), 81, j*8*2048, j*1024) for j in range(32)]
    itB = [(12 if (j >> 1) & 1 else 8, 8 + (j & 1), 82, ((j >> 3)*32 + ((j >> 2) & 1)*16 + (j & 1)*8)*2048, C1.AB + j*1024) for j in range(16)]
    def st1():
        rot_index(16)
        A("s_lshl_b32 s83, s85, 7\ns_add_u32 s81, s83, s86\ns_add_u32 s82, s83, s89")
    allit = itA + itB
    A("s_cmp_eq_u32 s32, 5\ns_cbranch_scc1 K1_g1p1")
    producer("K1_g1p0", C1, allit[:24], 16, st1)
    A("s_branch K1_pf\nK1_g1p1:")
    producer("K1_g1p1", C1, allit[24:], 16, st1)
    A("K1_pf:")
    if K1_PF:
        srd(8, 64, 2097152); srd(12, 66, 2097152); srd(16, 68, 14680064)
        A("s_sub_u32 s70, s2, 128\ns_lshl_b32 s70, s70, 1\ns_add_u32 s70, s70, s32\ns_sub_u32 s70, s70, 4")
        A("v_lshlrev_b32 v2, 7, v1")
        A("s_lshl_b32 s71, s70, 13")
        A("buffer_load_dword v20, v2, s[8:11], s71 offen\nbuffer_load_dword v20, v2, s[12:15], s71 offen")
        A("s_lshl_b32 s71, s70, 13")
        for i in range(7):
            A("buffer_load_dword v20, v2, s[16:19], s71 offen")
            if i < 6: A(f"s_add_u32 s71, s71, {256*8192}")
        A("s_waitcnt vmcnt(0)")
    A("K1_end:\ns_endpgm")

C2 = Core('N', 'T128', K2_MB, 3 if K2_MB == 8 else 4)
NSPLIT = K2_MB // 2
KEEP = 4 // NSPLIT
K2_STEPS = 88 // NSPLIT

def gen_k2():
    MB = K2_MB
    kernel_begin("k2_kernel")
    A("s_cmp_ge_u32 s2, 256\ns_cbranch_scc1 K2_end")
    A(f"s_load_dwordx4 s[44:47], s[0:1], {KA['cre']}")
    A(f"s_load_dwordx4 s[48:51], s[0:1], {KA['w2']}")
    A(f"s_load_dwordx2 s[54:55], s[0:1], {KA['out']}")
    A(f"s_load_dwordx2 s[52:53], s[0:1], {KA['ws']}")
    A(f"s_load_dwordx2 s[56:57], s[0:1], {KA['x']}")
    A(f"s_load_dwordx2 s[58:59], s[0:1], {KA['dsk']}")
    A("v_lshrrev_b32 v2, 6, v0\nv_and_b32 v1, 63, v0")
    A("v_readfirstlane_b32 s32, v2")
    A("s_and_b32 s33, s2, 7\ns_lshr_b32 s34, s2, 3")
    A(f"s_and_b32 s43, s33, {NSPLIT-1}")
    A("s_and_b32 s35, s34, 3\ns_lshr_b32 s36, s34, 2")
    A("s_add_u32 s88, s35, s36")
    if MB == 8:
        A("s_mov_b32 s40, s35\ns_lshr_b32 s37, s33, 2\ns_lshl_b32 s37, s37, 3\ns_add_u32 s39, s37, s36")
    else:
        A("s_mov_b32 s40, s36\ns_lshr_b32 s37, s33, 1\ns_lshl_b32 s37, s37, 2\ns_add_u32 s39, s37, s35")
    A(f"s_mul_i32 s41, s43, {KEEP}")
    A("s_mov_b32 s99, 0x10000")
    A("s_lshr_b32 s60, s32, 1\ns_and_b32 s61, s32, 1")
    A("s_waitcnt lgkmcnt(0)")
    srd(24, 52, WS_SIZE)
    A("s_cmp_ge_u32 s32, 4\ns_cbranch_scc1 K2_prod")
    srd(28, 54, 2048*1024*4)
    srd(8, 56, 2048*1024*2)
    srd(12, 58, 2048)
    srd(16, 50, 4096)
    stamp(0)
    C2.addr_setup(sq=41)
    zero_regs(ACC, MB*16)
    C2.loop("K2_g", K2_STEPS)
    stamp(1)
    TMB = MB*32
    A("s_lshl_b32 s62, s39, 7\ns_lshl_b32 s63, s61, 6\ns_add_u32 s62, s62, s63\ns_lshl_b32 s63, s41, 4\ns_add_u32 s62, s62, s63")
    A(f"s_mul_i32 s64, s40, {TMB}\ns_mul_i32 s63, s60, {TMB//2}\ns_add_u32 s64, s64, s63")
    A("v_and_b32 v2, 15, v1\nv_lshrrev_b32 v3, 4, v1")
    A("v_lshlrev_b32 v16, 11, v2\nv_lshlrev_b32 v17, 3, v3\nv_add_u32 v16, v16, v17")
    A("v_lshlrev_b32 v18, 1, v16")
    A("v_lshlrev_b32 v19, 3, v2\nv_lshlrev_b32 v20, 1, v2")
    A("v_lshlrev_b32 v21, 4, v1")
    A("s_lshl_b32 s65, s62, 11\ns_lshl_b32 s66, s64, 1\ns_add_u32 s65, s65, s66")
    A(f"s_lshl_b32 s67, s62, 3\ns_add_u32 s67, s67, {STAT}\ns_lshl_b32 s68, s62, 1")
    XR, DR, SR = 32, 48, 64
    A("s_nop 7")
    A(f"s_lshl_b32 s69, s32, 15\ns_add_u32 s69, s69, {XCH}")
    for n in range(1, NSPLIT):
        A(f"s_xor_b32 s70, s2, {n}\ns_lshl_b32 s70, s70, 17\ns_add_u32 s70, s70, s69\ns_add_u32 s70, s70, {(n-1)*8192}")
        i = 0
        for kb in range(KEEP):
            for mb in range(MB):
                r = ACC + (mb*4 + n*KEEP + kb)*4
                if i == 4: A("s_add_u32 s70, s70, 4096")
                A(f"buffer_store_dwordx4 v[{r}:{r+3}], v21, s[24:27], s70 offen offset:{(i%4)*1024} sc1")
                i += 1
    nbase = 0
    for kb in range(KEEP):
        if kb: A(f"s_add_u32 s71, s65, {kb*16*2048}")
        for mb in range(MB):
            r = XR + (kb*MB+mb)*2
            A(f"buffer_load_dwordx2 v[{r}:{r+1}], v16, s[8:11], s{71 if kb else 65} offen offset:{32*mb}"); nbase += 1
    for mb in range(MB):
        A(f"buffer_load_dwordx2 v[{DR+2*mb}:{DR+2*mb+1}], v17, s[12:15], s66 offen offset:{32*mb}"); nbase += 1
    for kb in range(KEEP):
        A(f"buffer_load_dwordx2 v[{SR+2*kb}:{SR+2*kb+1}], v19, s[24:27], s67 offen offset:{128*kb}"); nbase += 1
        A(f"buffer_load_ushort v{SR+4+kb}, v20, s[16:19], s68 offen offset:{32*kb}"); nbase += 1
    A(f"s_lshl_b32 s72, s32, 6\ns_add_u32 s72, s72, {FLAG}")
    A("v_mov_b32 v22, 0\nv_mov_b32 v23, 1")
    A(f"s_waitcnt vmcnt({nbase})")
    A("s_mov_b64 s[74:75], exec\ns_mov_b64 exec, 1")
    for n in range(1, NSPLIT):
        A(f"s_xor_b32 s70, s2, {n}\ns_lshl_b32 s70, s70, 8\ns_add_u32 s70, s70, s72")
        A(f"buffer_store_dword v23, v22, s[24:27], s70 offen offset:{4*n} sc1")
    A("s_mov_b64 exec, s[74:75]")
    A(f"s_waitcnt vmcnt({NSPLIT-1})")
    for kb in range(KEEP):
        A(f"v_lshlrev_b32 v{SR+4+kb}, 16, v{SR+4+kb}")
        for mb in range(MB):
            for h in range(2):
                xr = XR + (kb*MB+mb)*2 + h; dr = DR + 2*mb + h
                a = ACC + (mb*4+kb)*4 + 2*h
                A(f"v_lshlrev_b32 v2, 16, v{xr}\nv_and_b32 v3, 0xffff0000, v{xr}")
                A(f"v_sub_f32 v4, v2, v{SR+2*kb}\nv_sub_f32 v5, v3, v{SR+2*kb}")
                A(f"v_cvt_pk_bf16_f32 v4, v4, v5\nv_and_b32 v5, 0xffff0000, v4\nv_lshlrev_b32 v4, 16, v4")
                A(f"v_mul_f32 v4, v4, v{SR+2*kb+1}\nv_mul_f32 v5, v5, v{SR+2*kb+1}")
                A(f"v_cvt_pk_bf16_f32 v4, v4, v5\nv_and_b32 v5, 0xffff0000, v4\nv_lshlrev_b32 v4, 16, v4")
                A(f"v_lshlrev_b32 v6, 16, v{dr}\nv_and_b32 v7, 0xffff0000, v{dr}")
                A(f"v_mul_f32 v4, v4, v6\nv_mul_f32 v5, v5, v7")
                A(f"v_cvt_pk_bf16_f32 v4, v4, v5\nv_and_b32 v5, 0xffff0000, v4\nv_lshlrev_b32 v4, 16, v4")
                A(f"v_add_f32 v2, v2, v4\nv_add_f32 v3, v3, v5")
                A(f"v_add_f32 v2, v2, v{SR+4+kb}\nv_add_f32 v3, v3, v{SR+4+kb}")
                A(f"v_add_f32 v{a}, v{a}, v2\nv_add_f32 v{a+1}, v{a+1}, v3")
    A("s_lshl_b32 s70, s2, 8\ns_add_u32 s70, s70, s72")
    A("s_mov_b32 s73, 0x40000")
    A("K2_poll:")
    A("buffer_load_dwordx4 v[24:27], v22, s[24:27], s70 offen sc1")
    A("s_waitcnt vmcnt(0)")
    if NSPLIT == 4: A("v_and_b32 v25, v25, v26\nv_and_b32 v25, v25, v27")
    A("s_nop 0\nv_readfirstlane_b32 s71, v25\ns_cmp_eq_u32 s71, 1\ns_cbranch_scc1 K2_got")
    A("s_sleep 1\ns_sub_u32 s73, s73, 1\ns_cmp_lg_u32 s73, 0\ns_cbranch_scc1 K2_poll")
    A("K2_got:")
    stamp(2)
    A("s_lshl_b32 s70, s2, 17\ns_add_u32 s70, s70, s69")
    RB = 32
    nld = (NSPLIT-1)*8
    for i in range(8):
        for n in range(1, NSPLIT):
            r = RB + ((n-1)*8 + i)*4
            o = (n-1)*8192 + i*1024
            A(f"s_add_u32 s71, s70, {o//4096*4096}")
            A(f"buffer_load_dwordx4 v[{r}:{r+3}], v21, s[24:27], s71 offen offset:{o%4096} sc1")
    A("s_lshl_b32 s65, s65, 1")
    i = 0
    for kb in range(KEEP):
        if kb: A(f"s_add_u32 s65, s65, {16*4096}")
        for mb in range(MB):
            A(f"s_waitcnt vmcnt({nld - (i+1)*(NSPLIT-1) + i})")
            a = ACC + (mb*4+kb)*4
            for n in range(1, NSPLIT):
                r = RB + ((n-1)*8 + i)*4
                A(f"v_pk_add_f32 v[{a}:{a+1}], v[{a}:{a+1}], v[{r}:{r+1}]\nv_pk_add_f32 v[{a+2}:{a+3}], v[{a+2}:{a+3}], v[{r+2}:{r+3}]")
            A(f"buffer_store_dwordx4 v[{a}:{a+3}], v18, s[28:31], s65 offen offset:{64*mb}")
            i += 1
    stamp(3)
    A("s_endpgm")
    A("K2_prod:")
    voff_N(2048, 8)
    voff_T128(4096, 10)
    srd(8, 44, 2097152)
    srd(12, 52, WS_SIZE)
    A(f"s_mul_i32 s86, s40, {TMB*2048}")
    A("s_lshl_b32 s89, s39, 8")
    A(f"s_mul_i32 s70, s43, {K2_STEPS}\ns_mov_b32 s74, {HT}")
    def st2():
        rot_index(K2_STEPS)
        A("s_add_u32 s85, s85, s70")
        A("s_lshr_b32 s71, s85, 4\ns_and_b32 s72, s85, 15\ns_lshl_b32 s72, s72, 7\ns_add_u32 s81, s86, s72")
        A("s_cmp_eq_u32 s71, 0\ns_cselect_b32 s8, s44, s46\ns_cselect_b32 s9, s45, s47")
        A(f"s_lshl_b32 s72, s71, 21\ns_add_u32 s72, s72, {U - 2*2097152}")
        A(f"s_cmp_ge_u32 s71, 2\ns_cselect_b32 s8, s52, s8\ns_cselect_b32 s9, s53, s9\ns_cselect_b32 s10, s26, 2097152\ns_cselect_b32 s72, s72, 0")
        A(f"s_cselect_b32 s12, s48, s52\ns_cselect_b32 s13, s49, s53\ns_cselect_b32 s14, 14680064, s26\ns_cselect_b32 s73, {(-32*64*4096) & 0xffffffff}, s74")
        A("s_add_u32 s81, s81, s72")
        A("s_lshl_b32 s82, s85, 18\ns_add_u32 s82, s82, s73\ns_add_u32 s82, s82, s89")
    itA = [(8, 8 + (j & 1), 81, j*8*2048, j*1024) for j in range(MB*4)]
    itB = [(12, 10 + (j & 1), 82, j*4*4096, C2.AB + j*1024) for j in range(16)]
    allit = itA + itB
    h = len(allit)//2
    A("s_cmp_eq_u32 s32, 5\ns_cbranch_scc1 K2_p1")
    producer("K2_p0", C2, allit[:h], K2_STEPS, st2)
    A("s_endpgm\nK2_p1:")
    producer("K2_p1", C2, allit[h:], K2_STEPS, st2)
    A("K2_end:\ns_endpgm")

hdr = open("parallel_sum__ssm_conv_s5__mixer_token_mlp__prompt.s.ref").read().split("; Override launch geometry")[0]
A(hdr.rstrip())
A(f"; @launch kernel=k0_kernel grid=({K0_GRID},1,1) block=(256,1,1) lds=0")
A(f"; @launch kernel=k1_kernel grid=(256,1,1) block=(384,1,1) lds={K1_LDS}")
A(f"; @launch kernel=k2_kernel grid=(256,1,1) block=(384,1,1) lds={C2.SS*C2.NS}")
A('.amdgcn_target "amdgcn-amd-amdhsa--gfx950"')
gen_k0(); gen_k1(); gen_k2()
kernel_desc("k0_kernel", 104, 102)
kernel_desc("k1_kernel", 256, 102)
kernel_desc("k2_kernel", 256, 102)
open(OUT, "w").write("\n".join(L) + "\n")
print("wrote", OUT, len(L), "lines")
```

```python
import sys, os, struct

OUT = sys.argv[1] if len(sys.argv) > 1 else "parallel_sum__ssm_conv_s5__mixer_token_mlp__prompt.s"
def P(name, default):
    return int(os.environ.get(name, default))

STAMP = P("STAMP", 0)
K0_T = P("K0_T", 1)
K0_W1 = P("K0_W1", 0)
K1_PF = P("K1_PF", 1)
NB1 = P("NB1", 33)
RECV = P("RECV", 1)
LDSC = " sc1" if P("LDSC", 1) else ""
PF_C = P("PF_C", 0); PF_W2 = P("PF_W2", 0)
NPOLL = P("NPOLL", 2)
PROG = P("PROG", 1); T3 = P("T3", 0); T3_SKIP = P("T3_SKIP", 2); T1 = P("T1", 1); T1_SKIP = P("T1_SKIP", 2); TC = P("TC", 1); T2 = P("T2", 0)
OUTSC = ["", " sc1", " nt", " sc0 sc1"][P("OUTSC", 2)]
K0SC = ["", " sc1", " nt"][P("K0SC", 0)]
SPF = P("SPF", 0); SPF_ST = P("SPF_ST", 256)
SKEW = P("SKEW", 1)
MAP = P("MAP", 0); RG = P("RG", 8 if MAP else 4); PPAR = P("PPAR", 1)
NO_DMA = P("NO_DMA", 0); NO_MFMA = P("NO_MFMA", 0); NO_DS = P("NO_DS", 0)
BAR_AT = P("BAR_AT", 4)
NOBAR = P("NOBAR", 0)
DSW = P("DSW", 4)
BXQ = P("BXQ", 0); FLAG_AT = P("FLAG_AT", 4); BASE_MODE = P("BASE_MODE", 0)
N3A = P("N3A", 12)
TW1 = P("TW1", 0); TW3 = P("TW3", 0); TWS = P("TWS", 0); TWL = P("TWL", 0); TW1O = P("TW1O", 0); TW3O = P("TW3O", 14 - TW3)
NP1 = P("NP1", 14)
NUN = P("NUN", 1)
NGS = P("NGS", 2)
WBL2 = P("WBL2", 0)
USC = " sc1" if P("USC", 0) else ""
K0_TLB = P("K0_TLB", 0)

XN   = 0x0000000
H2   = 0x0400000
HT   = 0x0800000
U    = 0x1000000
COEF = 0x1800000
STAT = 0x1808000
AGG  = 0x1810000
FLAG = 0x1840000
UF   = FLAG
HTF  = FLAG + 0x1000
XF   = FLAG + 0x2000
LNF  = 0x1900000
XCH  = 0x2000000
STMP = 0x4000000
WS_SIZE = 0x4100000
SENT = 0xFFFFFFFF

KA = dict(x=0, lre=8, lim=16, bre=24, bim=32, cre=40, cim=48, ldt=56, dsk=64, w1=80, b1=88, w2=96, b2=104, out=112, dbg=120, ws=128)

L = []
INLOOP = [0]
def A(s):
    for line in s.split("\n"):
        if (NO_DMA == 1 or (NO_DMA == 2 and INLOOP[0])) and line.endswith(" lds"): line = "s_nop 0"
        if NO_MFMA and line.startswith("v_mfma"): line = "s_nop 0"
        if NO_DS and (line.startswith("ds_read_b128") or line.startswith("ds_read_b64_tr")): line = "s_nop 0"
        L.append(line)

def f32(x):
    return "0x%08x" % struct.unpack("<I", struct.pack("<f", x))[0]

def srd(s, ptr, size):
    A(f"s_mov_b32 s{s}, s{ptr}\ns_mov_b32 s{s+1}, s{ptr+1}\ns_mov_b32 s{s+2}, {size}\ns_mov_b32 s{s+3}, 0x20000")

def kernel_begin(name):
    A(f".text\n.globl {name}\n.p2align 8\n.type {name},@function\n{name}:")

def kernel_desc(name, vgpr, sgpr):
    acc = (vgpr + 3) // 4 * 4
    A('.section .rodata,"a"\n.p2align 6')
    A(f".amdhsa_kernel {name}")
    A(f"  .amdhsa_next_free_vgpr {vgpr}\n  .amdhsa_next_free_sgpr {sgpr}\n  .amdhsa_accum_offset {acc}")
    A("  .amdhsa_group_segment_fixed_size 0\n  .amdhsa_kernarg_size 136\n  .amdhsa_user_sgpr_count 2")
    A("  .amdhsa_user_sgpr_kernarg_segment_ptr 1\n  .amdhsa_system_sgpr_workgroup_id_x 1")
    A("  .amdhsa_float_denorm_mode_32 3\n  .amdhsa_float_denorm_mode_16_64 3")
    A(".end_amdhsa_kernel")

LOG2E = 1.4426950408889634

STAMP_N = [0]
def stamp(idx, wave=0, t=(6, 7, 5)):
    if not STAMP: return
    STAMP_N[0] += 1
    lab = f"stamp_skip_{STAMP_N[0]}"
    a, b, z = t
    A(f"s_cmp_lg_u32 s32, {wave}\ns_cbranch_scc1 {lab}")
    A(f"s_memrealtime s[96:97]\ns_waitcnt lgkmcnt(0)\nv_mov_b32 v{a}, s96\nv_mov_b32 v{b}, s97")
    A(f"s_lshl_b32 s98, s34, 7\ns_add_u32 s98, s98, s3\ns_lshl_b32 s98, s98, 8\ns_add_u32 s98, s98, {STMP + idx*8}\nv_mov_b32 v{z}, 0")
    A(f"buffer_store_dwordx2 v[{a}:{b}], v{z}, s[24:27], s98 offen")
    if idx <= 1:
        A(f"s_memtime s[96:97]\ns_waitcnt lgkmcnt(0)\ns_nop 1\nv_mov_b32 v{a}, s96\nv_mov_b32 v{b}, s97")
        A(f"buffer_store_dwordx2 v[{a}:{b}], v{z}, s[24:27], s98 offen offset:96")
    A(f"{lab}:")

PT3 = P("PT3", 0); PT1 = P("PT1", 0)
LNSC = ["", " sc1", " nt", " sc0 sc1"][P("LNSC", 1)]
TLBW = P("TLBW", 1); CPF = P("CPF", 1)
XSC = " sc1" if P("XSC", 1) else ""

def round_bf16(dst, src):
    A(f"v_cvt_pk_bf16_f32 {dst}, 0, {src}")

def wave_sum2(vs, ss):
    for op in ("quad_perm:[1,0,3,2] row_mask:0xf", "quad_perm:[2,3,0,1] row_mask:0xf", "row_half_mirror row_mask:0xf", "row_mirror row_mask:0xf",
               "row_bcast:15 row_mask:0xa", "row_bcast:31 row_mask:0xc"):
        A(f"s_nop {max(0, 2-len(vs))}")
        for v in vs: A(f"v_add_f32_dpp v{v}, v{v}, v{v} {op} bank_mask:0xf")
    A("s_nop 1")
    for v, s_ in zip(vs, ss): A(f"v_readlane_b32 s{s_}, v{v}, 63")

def layernorm2(X, PK, T, unpack):
    R = range(len(X))
    pk = lambda a: f"v[{a}:{a+1}]"
    for r in R: A(f"v_pk_add_f32 {pk(T[r])}, {pk(X[r])}, {pk(X[r]+2)}\nv_pk_add_f32 {pk(T[r]+2)}, {pk(X[r]+4)}, {pk(X[r]+6)}")
    for r in R: A(f"v_pk_add_f32 {pk(T[r]+4)}, {pk(X[r]+8)}, {pk(X[r]+10)}\nv_pk_add_f32 {pk(T[r]+6)}, {pk(X[r]+12)}, {pk(X[r]+14)}")
    for r in R: A(f"v_pk_add_f32 {pk(T[r])}, {pk(T[r])}, {pk(T[r]+2)}\nv_pk_add_f32 {pk(T[r]+4)}, {pk(T[r]+4)}, {pk(T[r]+6)}")
    for r in R: A(f"v_pk_add_f32 {pk(T[r])}, {pk(T[r])}, {pk(T[r]+4)}")
    for r in R: A(f"v_add_f32 v{T[r]}, v{T[r]}, v{T[r]+1}")
    wave_sum2([T[r] for r in R], [64+r for r in R])
    A("s_nop 0")
    for r in R: A(f"v_mov_b32 v{T[r]+6}, {f32(-1.0/1024)}\nv_mul_f32 v{T[r]+6}, s{64+r}, v{T[r]+6}")
    for i in range(0, 16, 4):
        for r in R:
            for h in range(2):
                A(f"v_pk_add_f32 {pk(T[r]+4*0+0 if False else PK[r]+2*h)}, {pk(X[r]+i+2*h)}, {pk(T[r]+6)} op_sel_hi:[1,0]")
        for r in R:
            for h in range(2):
                if i == 0: A(f"v_pk_mul_f32 {pk(T[r]+2*h)}, {pk(PK[r]+2*h)}, {pk(PK[r]+2*h)}")
                else: A(f"v_pk_fma_f32 {pk(T[r]+2*h)}, {pk(PK[r]+2*h)}, {pk(PK[r]+2*h)}, {pk(T[r]+2*h)}")
    for r in R: A(f"v_pk_add_f32 {pk(T[r])}, {pk(T[r])}, {pk(T[r]+2)}")
    for r in R: A(f"v_add_f32 v{T[r]}, v{T[r]}, v{T[r]+1}")
    wave_sum2([T[r] for r in R], [64+r for r in R])
    for r in R: round_bf16(f"v{T[r]+6}", f"v{T[r]+6}")
    for r in R: A(f"v_mov_b32 v{T[r]}, {f32(1.0/1024)}\nv_mul_f32 v{T[r]}, s{64+r}, v{T[r]}")
    for r in R: round_bf16(f"v{T[r]}", f"v{T[r]}")
    for r in R: A(f"v_add_f32 v{T[r]}, {f32(1e-5)}, v{T[r]}")
    for r in R: round_bf16(f"v{T[r]}", f"v{T[r]}")
    for r in R: A(f"v_sqrt_f32 v{T[r]}, v{T[r]}")
    for i in range(0, 16, 2):
        for r in R: A(f"v_pk_add_f32 {pk(X[r]+i)}, {pk(X[r]+i)}, {pk(T[r]+6)} op_sel_hi:[1,0]")
    for r in R: round_bf16(f"v{T[r]}", f"v{T[r]}")
    for r in R: A(f"v_rcp_f32 v{T[r]+2}, v{T[r]}")
    for i in range(16):
        for r in R: round_bf16(f"v{X[r]+i}", f"v{X[r]+i}")
    for r in R: A(f"v_fma_f32 v{T[r]+3}, -v{T[r]}, v{T[r]+2}, 1.0")
    for r in R: A(f"v_fma_f32 v{T[r]+2}, v{T[r]+2}, v{T[r]+3}, v{T[r]+2}")
    for i in range(0, 16, 2):
        for r in R: A(f"v_pk_mul_f32 {pk(X[r]+i)}, {pk(X[r]+i)}, {pk(T[r]+2)} op_sel_hi:[1,0]")
    for i in range(0, 16, 2):
        for r in R: A(f"v_cvt_pk_bf16_f32 v{PK[r]+i//2}, v{X[r]+i}, v{X[r]+i+1}")
    if unpack:
        for i in range(0, 16, 2):
            for r in R: A(f"v_lshlrev_b32 v{X[r]+i}, 16, v{PK[r]+i//2}\nv_and_b32 v{X[r]+i+1}, 0xffff0000, v{PK[r]+i//2}")

LX = [128, 144]; LRAW = [160, 168]; LPK1 = [176, 184]; LPK2 = [192, 200]; LT = [208, 216]; LFV, LFA, LV16 = 224, 225, 226
def ln_issue():
    srd(68, 56, 2048*1024*2)
    A("s_lshl_b32 s66, s2, 3\ns_lshl_b32 s67, s32, 1\ns_add_u32 s66, s66, s67\ns_lshl_b32 s67, s66, 11")
    A(f"v_lshlrev_b32 v{LV16}, 4, v1")
    for r in range(2):
        for h in range(2):
            A(f"buffer_load_dwordx4 v[{LRAW[r]+4*h}:{LRAW[r]+4*h+3}], v{LV16}, s[68:71], s67 offen offset:{2048*r + 1024*h}")
    A("s_barrier")
    A("s_bfe_u32 s64, s66, 0x30002\ns_lshl_b32 s64, s64, 4\ns_bfe_u32 s65, s66, 0x20005\ns_lshl_b32 s65, s65, 2\ns_add_u32 s64, s64, s65")
    A("s_and_b32 s65, s66, 0xffffff83\ns_add_u32 s64, s64, s65\ns_lshl_b32 s73, s64, 11")
    if XN: A(f"s_add_u32 s73, s73, {XN}")
    A(f"s_add_u32 s72, s67, {H2}")
    if TLBW:
        A(f"v_mov_b32 v{LFA}, 0\ns_mov_b64 exec, 1\nbuffer_load_dword v{LFV}, v{LFA}, s[24:27], s73 offen\nbuffer_load_dword v{LFV}, v{LFA}, s[24:27], s72 offen\ns_mov_b64 exec, -1")
def ln_compute(nafter):
    A(f"s_waitcnt vmcnt({nafter + 2*TLBW})")
    for r in range(2):
        for i in range(8):
            A(f"v_lshlrev_b32 v{LX[r]+2*i}, 16, v{LRAW[r]+i}\nv_and_b32 v{LX[r]+2*i+1}, 0xffff0000, v{LRAW[r]+i}")
    stamp(16, t=(2, 3, 4))
    layernorm2(LX, LPK1, LT, True)
    for r in range(2):
        for h in range(2):
            A(f"buffer_store_dwordx4 v[{LPK1[r]+4*h}:{LPK1[r]+4*h+3}], v{LV16}, s[24:27], s73 offen offset:{2048*r + 1024*h}{LNSC}")
    layernorm2(LX, LPK2, LT, False)
    for r in range(2):
        for h in range(2):
            A(f"buffer_store_dwordx4 v[{LPK2[r]+4*h}:{LPK2[r]+4*h+3}], v{LV16}, s[24:27], s72 offen offset:{2048*r + 1024*h}{LNSC}")
    stamp(17, t=(2, 3, 4))
    A("s_waitcnt vmcnt(0)")
    A("s_barrier")
    stamp(18, t=(2, 3, 4))

def coef(i0, o, t):
    a, b, c = i0, i0+1, i0+2
    A(f"v_lshlrev_b32 v{a}, 16, v{a}\nv_lshlrev_b32 v{b}, 16, v{b}\nv_lshlrev_b32 v{c}, 16, v{c}")
    A(f"v_mul_f32 v{c}, {f32(LOG2E)}, v{c}\nv_exp_f32 v{c}, v{c}\ns_nop 0")
    round_bf16(f"v{c}", f"v{c}")
    A(f"v_mul_f32 v{t}, v{c}, v{a}\nv_mul_f32 v{t+1}, v{c}, v{b}")
    A(f"v_mul_f32 v{t+2}, {f32(LOG2E)}, v{t}\nv_exp_f32 v{t+2}, v{t+2}")
    A(f"v_mul_f32 v{t+3}, {f32(0.15915494309189535)}, v{t+1}\nv_fract_f32 v{t+3}, v{t+3}")
    A(f"v_cos_f32 v{t+4}, v{t+3}\nv_sin_f32 v{t+5}, v{t+3}\ns_nop 0")
    A(f"v_mul_f32 v{o}, v{t+2}, v{t+4}\nv_mul_f32 v{o+1}, v{t+2}, v{t+5}")
    A(f"v_add_f32 v{t+6}, -1.0, v{o}")
    A(f"v_mul_f32 v{t+7}, v{a}, v{a}\nv_fmac_f32 v{t+7}, v{b}, v{b}\nv_rcp_f32 v{t+8}, v{t+7}\ns_nop 0")
    A(f"v_fma_f32 v{t+9}, -v{t+7}, v{t+8}, 1.0\nv_fma_f32 v{t+8}, v{t+8}, v{t+9}, v{t+8}\nv_add_f32 v{t+8}, v{t+8}, v{t+8}")
    A(f"v_mul_f32 v{o+2}, v{t+6}, v{a}\nv_fmac_f32 v{o+2}, v{o+1}, v{b}\nv_mul_f32 v{o+2}, v{o+2}, v{t+8}")
    A(f"v_mul_f32 v{o+3}, v{o+1}, v{a}\nv_fma_f32 v{o+3}, -v{t+6}, v{b}, v{o+3}\nv_mul_f32 v{o+3}, v{o+3}, v{t+8}")
    A(f"v_mov_b32 v{o+4}, v{o}\nv_mov_b32 v{o+5}, v{o+1}")
    def csq(r, i):
        A(f"v_mul_f32 v{t+9}, v{r}, v{r}\nv_fma_f32 v{t+9}, -v{i}, v{i}, v{t+9}\nv_mul_f32 v{t+10}, v{r}, v{i}\nv_add_f32 v{i}, v{t+10}, v{t+10}\nv_mov_b32 v{r}, v{t+9}")
    for _ in range(5): csq(o+4, o+5)
    A(f"v_mov_b32 v{o+6}, v{o+4}\nv_mov_b32 v{o+7}, v{o+5}")
    for _ in range(2): csq(o+6, o+7)

FSP = P("FSP", 16); NREP = P("NREP", 8); PSL = P("PSL", 2)
def snap_issue():
    A(f"v_mul_u32_u24 v45, {FSP}, v1\ns_and_b32 s62, s2, {NREP-1}\ns_mul_i32 s62, s62, {256*FSP}\ns_add_u32 s62, s62, {LNF}")
    flag_loads(40)
    A(f"v_and_b32 v46, {NREP-1}, v1\nv_mul_u32_u24 v46, {256*FSP}, v46\ns_mul_i32 s63, s2, {FSP}\ns_add_u32 s63, s63, {LNF}")
    A("buffer_load_dword v44, v46, s[24:27], s63 offen sc1")
    return 5
def flag_loads(d):
    for i in range(4):
        A(f"s_add_u32 s64, s62, {i*64*FSP}\nbuffer_load_dword v{d+i}, v45, s[24:27], s64 offen sc1")
def ln_publish(x):
    A(f"v_xor_b32 v47, {x}, v44\ns_mov_b64 exec, {(1 << NREP)-1}\nbuffer_store_dword v47, v46, s[24:27], s63 offen sc1\ns_mov_b64 exec, -1")
def ln_poll(tag):
    A("s_mov_b32 s73, 0x40000")
    A(f"{tag}_lnpoll:")
    flag_loads(48)
    A("s_waitcnt vmcnt(0)")
    for i in range(4): A(f"v_xor_b32 v{48+i}, v{48+i}, v{40+i}")
    A("v_min_u32 v48, v48, v49\nv_min3_u32 v48, v48, v50, v51")
    A(f"v_cmp_eq_u32 vcc, 0, v48\ns_cmp_eq_u64 vcc, 0\ns_cbranch_scc1 {tag}_lnok")
    A(f"s_sleep {PSL}\ns_sub_u32 s73, s73, 1\ns_cmp_lg_u32 s73, 0\ns_cbranch_scc1 {tag}_lnpoll")
    A(f"{tag}_lnok:")
    ln_publish(2)

FR = 32
ACC = 128

class Core:
    def __init__(self, tA, tB, MB, NS, areg, breg):
        self.tA, self.tB, self.MB, self.NS = tA, tB, MB, NS
        self.areg, self.breg = areg, breg
        self.AB = 64*448 if tA == 'T224' else MB*32*128
        self.SS = self.AB + 16384
        self.FS = (MB + 4)*4
        self.na = {'N': 2, 'F': 1, 'T224': 4}[tA]
        self.nb = {'N': 2, 'H': 2, 'T128': 4}[tB]

    def addr_setup(self, sq=None):
        MB, AR, BR = self.MB, self.areg, self.breg
        A("v_and_b32 v2, 15, v1\nv_lshrrev_b32 v3, 4, v1")
        if self.tA == 'N' or self.tB == 'N':
            A("v_lshrrev_b32 v4, 1, v2\nv_xor_b32 v4, v4, v3\nv_lshlrev_b32 v4, 4, v4\nv_lshlrev_b32 v5, 7, v2\nv_add_u32 v4, v4, v5")
        if self.tA == 'N':
            A(f"s_mul_i32 s90, s60, {MB*16*128}\nv_add_u32 v{AR}, s90, v4\nv_xor_b32 v{AR+1}, 64, v{AR}")
        if self.tB == 'N':
            A(f"s_lshl_b32 s90, s61, 13\ns_add_u32 s90, s90, {self.AB}\nv_add_u32 v{BR}, s90, v4\nv_xor_b32 v{BR+1}, 64, v{BR}")
        if self.tA == 'F':
            A(f"s_mul_i32 s90, s60, {MB*2048}\nv_lshlrev_b32 v4, 4, v1\nv_add_u32 v{AR}, s90, v4")
        A("v_lshrrev_b32 v5, 2, v1\nv_and_b32 v6, 3, v1\nv_lshlrev_b32 v6, 3, v6")
        if self.tA == 'T224':
            A("v_mul_u32_u24 v7, 448, v5\nv_add_u32 v7, v7, v6")
            A("v_and_b32 v4, 1, v3\nv_lshlrev_b32 v4, 5, v4")
            A("s_lshl_b32 s90, s60, 8\nv_add_u32 v2, s90, v7")
            A(f"v_add_u32 v{AR}, v2, v4")
            A(f"v_sub_u32 v{AR+1}, v2, v4\nv_add_u32 v{AR+1}, 32, v{AR+1}")
            A(f"v_add_u32 v{AR+2}, v7, v4\nv_add_u32 v{AR+2}, 192, v{AR+2}")
            A(f"v_sub_u32 v{AR+3}, v7, v4\nv_add_u32 v{AR+3}, 224, v{AR+3}")
        if self.tB == 'T128':
            A("v_and_b32 v4, 7, v5\ns_lshl_b32 s90, s61, 2")
            if sq is not None: A(f"s_add_u32 s90, s90, s{sq}")
            A("v_xor_b32 v4, s90, v4\nv_lshlrev_b32 v4, 5, v4\nv_lshlrev_b32 v7, 8, v5\nv_add_u32 v7, v7, v6")
            A(f"v_add_u32 v7, {self.AB}, v7")
            for nb in range(4):
                A(f"v_xor_b32 v2, {32*nb}, v4\nv_add_u32 v{BR+nb}, v7, v2")
        if self.tB == 'H':
            A("v_lshrrev_b32 v4, 1, v3\nv_lshlrev_b32 v4, 12, v4")
            A("v_bfe_u32 v7, v1, 1, 1\nv_mul_u32_u24 v7, 1088, v7\nv_add_u32 v4, v4, v7")
            A("v_and_b32 v7, 1, v3\nv_lshlrev_b32 v7, 7, v7\nv_add_u32 v4, v4, v7")
            A("v_and_b32 v7, 3, v5\nv_lshlrev_b32 v7, 4, v7\nv_add_u32 v4, v4, v7")
            A("v_and_b32 v7, 1, v1\nv_lshlrev_b32 v7, 3, v7\nv_add_u32 v4, v4, v7")
            A(f"s_lshl_b32 s90, s61, 9\ns_add_u32 s90, s90, {self.AB}\nv_add_u32 v{BR}, s90, v4\nv_xor_b32 v{BR+1}, 64, v{BR}")

    def reads(self, kk):
        fs = FR + kk*self.FS
        MB, AR, BR = self.MB, self.areg, self.breg
        ra, rb = [], []
        for mb in range(MB):
            d = fs + 4*mb
            if self.tA == 'N':
                ra.append(f"ds_read_b128 v[{d}:{d+3}], v{AR+kk} offset:{2048*mb}")
            elif self.tA == 'F':
                ra.append(f"ds_read_b128 v[{d}:{d+3}], v{AR} offset:{2048*mb + 1024*kk}")
            else:
                for rd in range(2):
                    if mb < 6: a, o = AR + (mb & 1), 64*(mb >> 1)
                    else: a, o = AR + mb - 4, 0
                    ra.append(f"ds_read_b64_tr_b16 v[{d+2*rd}:{d+2*rd+1}], v{a} offset:{o + rd*7168 + kk*14336}")
        for nb in range(4):
            d = fs + 4*MB + 4*nb
            if self.tB == 'N':
                rb.append(f"ds_read_b128 v[{d}:{d+3}], v{BR+kk} offset:{2048*nb}")
            elif self.tB == 'T128':
                for rd in range(2):
                    rb.append(f"ds_read_b64_tr_b16 v[{d+2*rd}:{d+2*rd+1}], v{BR+nb} offset:{rd*4096 + kk*8192}")
            else:
                for rd in range(2):
                    rb.append(f"ds_read_b64_tr_b16 v[{d+2*rd}:{d+2*rd+1}], v{BR+rd} offset:{kk*8192 + (nb&1)*2048 + (nb>>1)*256}")
        pa = len(ra)//MB
        return ra[:pa] + rb + ra[pa:]

    def mfmas(self, kk, csrc=None):
        fs = FR + kk*self.FS
        MB = self.MB
        r = []
        for mb in range(MB):
            if self.tA == 'T224' and mb >= 6:
                lst = [(nb, 24 + (mb-6)*2 + nb) for nb in ((0, 1) if mb == 6 else (1, 0))]
            else:
                lst = [(nb, mb*4+nb) for nb in (range(4) if mb % 2 == 0 else range(3, -1, -1))]
            for nb, blk in lst:
                d = ACC + blk*4
                c = f"v[{d}:{d+3}]" if csrc is None else csrc(mb, nb)
                r.append(f"v_mfma_f32_16x16x32_bf16 v[{d}:{d+3}], v[{fs+4*mb}:{fs+4*mb+3}], v[{fs+4*MB+4*nb}:{fs+4*MB+4*nb+3}], {c}")
        return r

    def substep(self, kk, rd, bar, upd, updv=True, fill=None, csrc=None):
        mf = self.mfmas(kk, csrc)
        A("s_waitcnt lgkmcnt(0)")
        start = BAR_AT if bar else 1
        nslots = len(mf) - start - 5
        sched = {}
        for i, x in enumerate(rd):
            sl = start + (i*nslots)//max(len(rd), 1)
            sched.setdefault(sl, []).append(x)
        regs = [self.areg+i for i in range(self.na)] + [self.breg+i for i in range(self.nb)]
        half = (len(regs)+1)//2
        post = {}
        if upd:
            post[0] = [f"s_add_u32 s93, s93, 1\ns_cmp_eq_u32 s93, {self.NS}\ns_cselect_b32 s94, {(-(self.NS-1)*self.SS) & 0xffffffff}, s95\ns_cselect_b32 s93, 0, s93"]
            if updv:
                post[1] = [f"v_add_u32 v{r}, s94, v{r}" for r in regs[:half]]
                post[2] = [f"v_add_u32 v{r}, s94, v{r}" for r in regs[half:]]
        fl = {}
        if fill:
            n = len(mf)
            base = [4*len(post.get(m, [])) + DSW*len(sched.get(m+1, [])) for m in range(n)]
            tot = sum(c for _, c in fill)
            T = 0.0
            while sum(max(0.0, T - x) for x in base) < tot: T += 0.25
            cum = 0.0; done = 0.0; i = 0
            for m in range(n):
                cum += max(0.0, T - base[m])
                while i < len(fill) and (done + fill[i][1]/2 <= cum or m == n-1):
                    fl.setdefault(m, []).append(fill[i][0]); done += fill[i][1]; i += 1
        for m, x in enumerate(mf):
            if m == start and bar and not (NOBAR and bar != 'x'): A("s_barrier")
            for y in sched.get(m, []): A(y)
            A(x)
            for y in post.get(m, []): A(y)
            for y in fl.get(m, []): A(y)

    def start(self):
        A(f"s_mov_b32 s93, 0\ns_mov_b32 s95, {self.SS}")
        A("s_barrier")
        for x in self.reads(0): A(x)
    def body(self, tag):
        A(f"{tag}_loop:")
        self.substep(0, self.reads(1), False, False)
        self.substep(1, self.reads(0), True, True)
        A(f"s_sub_u32 s92, s92, 1\ns_cmp_lg_u32 s92, 0\ns_cbranch_scc1 {tag}_loop")
    def tail(self, xbar=False):
        self.substep(0, self.reads(1), False, False)
        self.substep(1, [], 'x' if xbar else False, False)
    def loop(self, tag, nsteps, xbar=False):
        self.start()
        stamp(11, t=(2, 3, 4))
        A(f"s_mov_b32 s92, {nsteps-1}")
        self.body(tag)
        self.tail(xbar)

def zero_regs(base, n):
    for i in range(n): A(f"v_mov_b32 v{base+i}, 0")

def voff_N(pitch, dst):
    A("v_lshrrev_b32 v2, 3, v1\nv_and_b32 v3, 7, v1\nv_lshrrev_b32 v4, 1, v2\nv_xor_b32 v3, v3, v4")
    A(f"s_mov_b32 s90, {pitch}\nv_mul_lo_u32 v2, v2, s90\nv_lshlrev_b32 v3, 4, v3")
    A(f"v_add_u32 v{dst}, v2, v3\nv_xor_b32 v3, 64, v3\nv_add_u32 v{dst+1}, v2, v3")

def voff_T128(pitch, dst):
    A("v_lshrrev_b32 v2, 4, v1\nv_and_b32 v3, 15, v1\nv_lshlrev_b32 v4, 1, v2\nv_xor_b32 v3, v3, v4")
    A(f"s_mov_b32 s90, {pitch}\nv_mul_lo_u32 v2, v2, s90\nv_lshlrev_b32 v3, 4, v3")
    A(f"v_add_u32 v{dst}, v2, v3\nv_xor_b32 v3, 128, v3\nv_add_u32 v{dst+1}, v2, v3")

def voff_T224(pitch, dst):
    A(f"s_mov_b32 s90, {pitch}")
    for j in range(7):
        A(f"v_add_u32 v2, {64*j}, v1\nv_mul_u32_u24 v3, 2341, v2\nv_lshrrev_b32 v3, 16, v3")
        A("v_mul_u32_u24 v4, 28, v3\nv_sub_u32 v2, v2, v4")
        A("v_bfe_u32 v4, v3, 2, 1\nv_lshlrev_b32 v4, 1, v4\nv_xor_b32 v2, v2, v4\nv_lshlrev_b32 v2, 4, v2")
        A(f"v_mul_lo_u32 v3, v3, s90\nv_add_u32 v{dst+j}, v3, v2")

def issue(core, items, setup_stage, pol=""):
    NS, SS = core.NS, core.SS
    setup_stage()
    prev = None
    for (sr, v, sb, ro, lo) in items:
        if lo == 'S':
            for i in range(v):
                A(f"s_buffer_load_dwordx2 s[100:101], s[{sr}:{sr+3}], s{sb} offset:{i*SPF_ST}")
            A(f"s_add_u32 s{sb}, s{sb}, {ro}")
            continue
        if lo is None:
            A(f"buffer_load_dword v21, v{v}, s[{sr}:{sr+3}], s{sb} offen\ns_add_u32 s{sb}, s{sb}, {ro}")
            continue
        if prev is None: A(f"s_add_u32 m0, s80, {lo}")
        else: A(f"s_add_u32 m0, m0, {lo-prev}")
        prev = lo
        A(f"s_add_u32 s83, s{sb}, {ro}")
        A(f"buffer_load_dwordx4 v{v}, s[{sr}:{sr+3}], s83 offen{pol if pol or sr != 24 else XSC} lds")
    A(f"s_add_u32 s80, s80, {SS}\ns_cmp_eq_u32 s80, {NS*SS}\ns_cselect_b32 s80, 0, s80")

def vcount(items): return len([x for x in items if x[4] != 'S'])
def prod_pro(core, items, setup, pol="", extra=0):
    NS = core.NS; cnt = vcount(items)
    A("s_mov_b32 s80, 0\ns_mov_b32 s87, 0")
    for i in range(NS):
        if (i+1)*cnt + extra > 63: A(f"s_waitcnt vmcnt({63-cnt})")
        issue(core, items, setup, pol)
def prod_p0(core, cnt):
    A(f"s_waitcnt vmcnt({(core.NS-1)*cnt})\ns_barrier")
def prod_loop(tag, core, items, setup, pol=""):
    NS = core.NS; cnt = vcount(items)
    A(f"{tag}_loop:")
    A(f"s_waitcnt vmcnt({(NS-2-P('LESSINF',0))*cnt})" + ("" if NOBAR else "\ns_barrier"))
    INLOOP[0] = 1
    issue(core, items, setup, pol)
    INLOOP[0] = 0
    A(f"s_sub_u32 s84, s84, 1\ns_cmp_lg_u32 s84, 0\ns_cbranch_scc1 {tag}_loop")
def prod_tail(core, cnt):
    for r in range(core.NS-2, -1, -1):
        A(f"s_waitcnt vmcnt({r*cnt})" + ("" if NOBAR else "\ns_barrier"))

def producer(tag, core, items, nsteps, setup, late, poll, pre=None, E=(1, 2), pre0=None):
    NS = core.NS
    early = [x for x in items if not late(x) and x[4] is not None]
    lat = [x for x in items if late(x) or x[4] is None]
    out = [0]
    def stage(its, st):
        if not its: return 0
        n = vcount(its)
        if out[0] + n > 63:
            A(f"s_waitcnt vmcnt({63-n})"); out[0] = 63 - n
        A(f"s_mov_b32 s80, {st*core.SS}\ns_mov_b32 s87, {st}")
        issue(core, its, setup)
        out[0] += n
        return n
    stamp(14, wave=4, t=(2, 3, 4))
    out[0] += STAMP + CPF
    if poll: out[0] += snap_issue()
    A("s_barrier")
    ne = 0
    for st in range(E[0]): ne += stage(early, st)
    if pre0: out[0] += pre0()
    A("s_barrier")
    if poll:
        A(f"s_waitcnt vmcnt({ne})")
        ln_publish(1); out[0] += 1
    for st in range(E[0], E[1]): stage(early, st)
    if poll:
        ln_poll(tag); out[0] = 1
    if pre: pre(); out[0] = 63
    stamp(19, wave=5, t=(2, 3, 4))
    out[0] += STAMP
    A("s_barrier")
    n = []
    for st in range(NS):
        n.append(stage(lat if st < E[1] else items, st))
    if not lat:
        n = [vcount(early)]*NS
    A(f"s_mov_b32 s80, 0\ns_mov_b32 s87, {NS}")
    if STAMP: A(f"s_waitcnt vmcnt({n[1]+n[2]})")
    stamp(15, wave=4, t=(2, 3, 4))
    assert NS == 3
    A(f"s_waitcnt vmcnt({n[1]+n[2]})\ns_barrier")
    A(f"s_waitcnt vmcnt({n[2]})\ns_barrier")
    issue(core, items, setup)
    A(f"s_mov_b32 s84, {nsteps-NS-1}")
    prod_loop(tag, core, items, setup)
    prod_tail(core, vcount(items))

def rot_index(n4=None):
    if SKEW:
        if n4 is None:
            A(f"s_add_u32 s85, s87, s88\ns_and_b32 s85, s85, {RG-1}\ns_andn2_b32 s83, s87, {RG-1}\ns_or_b32 s85, s85, s83")
        else:
            A(f"s_cmp_lt_u32 s87, s69\ns_cselect_b32 s83, 3, 0\ns_cmp_lt_u32 s87, s{n4}\ns_cselect_b32 s83, {RG-1}, s83")
            A("s_add_u32 s85, s87, s88\ns_and_b32 s85, s85, s83\ns_andn2_b32 s83, s87, s83\ns_or_b32 s85, s85, s83")
    else:
        A("s_mov_b32 s85, s87")
    A("s_add_u32 s87, s87, 1")

def cfma(dr, di, ar, ai, xr, xi, yr, yi):
    A(f"v_fma_f32 v{dr}, v{ar}, v{xr}, v{yr}\nv_fma_f32 v{di}, v{ar}, v{xi}, v{yi}")
    A(f"v_fma_f32 v{dr}, -v{ai}, v{xi}, v{dr}\nv_fma_f32 v{di}, v{ai}, v{xr}, v{di}")
def cmul(dr, di, ar, ai, xr, xi):
    A(f"v_mul_f32 v{dr}, v{ar}, v{xr}\nv_mul_f32 v{di}, v{ar}, v{xi}")
    A(f"v_fma_f32 v{dr}, -v{ai}, v{xi}, v{dr}\nv_fma_f32 v{di}, v{ai}, v{xr}, v{di}")

def flag_poll(tag, voff, soff):
    A("s_mov_b32 s73, 0x40000")
    A(f"{tag}_poll:")
    A(f"buffer_load_dword v20, v{voff}, s[24:27], s{soff} offen sc1")
    A("s_waitcnt vmcnt(0)")
    A(f"v_cmp_eq_u32 vcc, 1, v20\ns_cmp_eq_u64 vcc, -1\ns_cbranch_scc1 {tag}_ok")
    A(f"s_sleep 2\ns_sub_u32 s73, s73, 1\ns_cmp_lg_u32 s73, 0\ns_cbranch_scc1 {tag}_poll")
    A(f"{tag}_ok:")
C1 = Core('N', 'N', 8, 3, 8, 12)
C3 = Core('T224', 'T128', 8, 3, 8, 12)
CA = Core('N', 'H', 4, 4, 8, 16)
CB = Core('F', 'T128', 4, 4, 10, 12)
K1_LDS = max(C1.SS*C1.NS, C3.SS*C3.NS, CB.SS*CB.NS + 4*16*272)
NB3 = 56 - NB1
E3 = (P('E3A', 1), P('E3B', 2)); E1 = (P('E1A', 1), P('E1B', 2))
N1A = 32 - N3A
assert N3A % RG == 0 and NUN + 1 < N3A
XR, DR, DU = 96, 28, 16
PD = 192
TP = 272
BREG = 131072
def xn_reg(k): return ACC + 16*(k % 4) + 4*(k // 4)

def rnd(dst, src): return f"v_cvt_pk_bf16_f32 v{dst}, 0, v{src}"

def base_setup():
    srd(8, 56, 2048*1024*2); srd(12, 58, 2048)
    A("s_lshl_b32 s82, s43, 7\ns_lshl_b32 s83, s61, 6\ns_add_u32 s80, s82, s83\ns_lshl_b32 s80, s80, 11")
    A("s_lshl_b32 s83, s61, 3\ns_add_u32 s81, s82, s83\ns_lshl_b32 s81, s81, 11")
    if XN: A(f"s_add_u32 s81, s81, {XN}")
    A("s_lshl_b32 s82, s37, 8\ns_lshl_b32 s83, s60, 7\ns_add_u32 s82, s82, s83")
    A("s_add_u32 s80, s80, s82\ns_add_u32 s81, s81, s82")
    A("v_and_b32 v5, 15, v1\nv_lshlrev_b32 v5, 3, v5\nv_lshrrev_b32 v15, 4, v1\nv_lshlrev_b32 v15, 11, v15\nv_add_u32 v15, v15, v5")
def base_load_x():
    A(f"buffer_load_dwordx2 v[{DR2}:{DR2+1}], v5, s[12:15], s82 offen")
    for k in range(16):
        if k: A(f"s_add_u32 s80, s80, {4*2048}")
        A(f"buffer_load_dwordx2 v[{XR+2*k}:{XR+2*k+1}], v15, s[8:11], s80 offen")
def base_load_xn():
    for k in range(16):
        A(f"s_add_u32 s83, s81, {(16*(k & 7) + 4*(k >> 3))*2048}")
        r = xn_reg(k)
        A(f"buffer_load_dwordx2 v[{r}:{r+1}], v15, s[24:27], s83 offen")
DR2 = 6

def base_round(nb):
    its = []
    for j in range(4):
        k = 4*nb + j
        for h in range(2):
            its.append((XR + 2*k + h, xn_reg(k) + h, DU + 2*h, 32 + (nb % 2)*32 + 4*j + 2*h, 48 + (nb % 2)*32 + 4*j + 2*h))
    for (x, n, d, a, t) in its: A(f"v_lshlrev_b32 v{t}, 16, v{n}\nv_and_b32 v{t+1}, 0xffff0000, v{n}")
    for (x, n, d, a, t) in its: A(f"v_pk_mul_f32 v[{t}:{t+1}], v[{t}:{t+1}], v[{d}:{d+1}]")
    for (x, n, d, a, t) in its: A(f"v_lshlrev_b32 v{a}, 16, v{x}\nv_and_b32 v{a+1}, 0xffff0000, v{x}")
    for (x, n, d, a, t) in its: A(rnd(t, t) + "\n" + rnd(t+1, t+1))
    for (x, n, d, a, t) in its: A(f"v_pk_add_f32 v[{a}:{a+1}], v[{a}:{a+1}], v[{t}:{t+1}]")
    A("s_waitcnt lgkmcnt(0)")
    for j in range(4):
        a = 32 + (nb % 2)*32 + 4*j
        A(f"ds_write_b128 v27, v[{a}:{a+3}] offset:{j*4*TP}")
    A("s_waitcnt lgkmcnt(0)")
    for mb in range(4):
        a = ACC + (mb*4+nb)*4
        A(f"ds_read_b128 v[{a}:{a+3}], v28 offset:{mb*64}")

def tr_regions(n):
    ls = (n-1) % 4
    lo, hi = ls*32768, (ls+1)*32768
    r, p = [], 0
    while len(r) < 4:
        if p < hi and p + 64*TP > lo: p = hi
        r.append(p); p += 64*TP
    assert p <= K1_LDS
    return r

def pb_setup(is_recv, nsteps):
    A("v_mov_b32 v22, 0\nv_mov_b32 v23, 1\nv_lshlrev_b32 v21, 4, v1")
    A(f"s_lshl_b32 s69, s38, 2\ns_add_u32 s69, s69, s32\ns_lshl_b32 s70, s69, 6\ns_add_u32 s70, s70, {XF}\ns_lshl_b32 s69, s69, 14\ns_add_u32 s69, s69, {XCH}")
    rg = tr_regions(nsteps)
    A(f"s_mov_b32 s63, {rg[0]}")
    for w in range(1, 4): A(f"s_cmp_eq_u32 s32, {w}\ns_cselect_b32 s63, {rg[w]}, s63")
    A(f"s_mul_i32 s65, s32, {16*TP}\ns_add_u32 s65, s65, {BREG}")
    A("v_and_b32 v2, 15, v1\nv_lshrrev_b32 v3, 4, v1")
    A(f"v_mul_u32_u24 v5, {TP}, v2\nv_lshlrev_b32 v4, 4, v3\nv_add3_u32 v25, v5, v4, s63")
    if is_recv: A("v_add3_u32 v28, v5, v4, s65")
    A(f"v_mul_u32_u24 v5, {TP}, v3\nv_lshlrev_b32 v4, 4, v2\nv_add3_u32 v26, v5, v4, s63")
    if is_recv: A("v_add3_u32 v27, v5, v4, s65")
    A("v_lshlrev_b32 v20, 12, v3\nv_add_u32 v20, v20, v4")
    A("s_lshl_b32 s62, s43, 7\ns_lshl_b32 s63, s61, 6\ns_add_u32 s62, s62, s63")
    A("s_lshl_b32 s64, s37, 7\ns_lshl_b32 s63, s60, 6\ns_add_u32 s64, s64, s63")
    srd(28, 54, 2048*1024*4)

def flag_store(flag_s):
    return (f"s_mov_b64 s[74:75], exec\ns_mov_b64 exec, 1\nbuffer_store_dword v23, v22, s[24:27], s{flag_s} offen sc1\ns_mov_b64 exec, s[74:75]")

def transpose_acc():
    A("s_nop 7\ns_nop 3")
    for nb in range(4):
        for mb in range(4):
            a = ACC + (mb*4+nb)*4
            A(f"ds_write_b128 v25, v[{a}:{a+3}] offset:{nb*16*TP + mb*64}")
    A("s_waitcnt lgkmcnt(0)")
    for k in range(16):
        A(f"ds_read_b128 v[{FR+4*k}:{FR+4*k+3}], v26 offset:{k*4*TP}")

GC0 = -2.0 * 0.7978845608028654 * LOG2E
GC1 = GC0 * 0.044715
def gelu_pk(prs):
    for (r, b, t, d) in prs: A(rnd(t, r) + "\n" + rnd(t+1, r+1))
    for (r, b, t, d) in prs: A(f"v_pk_add_f32 v[{t}:{t+1}], v[{t}:{t+1}], v[{b}:{b+1}]")
    for (r, b, t, d) in prs: A(rnd(t, t) + "\n" + rnd(t+1, t+1))
    for (r, b, t, d) in prs: A(f"v_pk_mul_f32 v[{t+2}:{t+3}], v[{t}:{t+1}], v[{t}:{t+1}]")
    for (r, b, t, d) in prs: A(f"v_pk_fma_f32 v[{t+2}:{t+3}], v[{t+2}:{t+3}], v[28:29], v[28:29] op_sel:[0,0,1] op_sel_hi:[1,0,1]")
    for (r, b, t, d) in prs: A(f"v_pk_mul_f32 v[{t+2}:{t+3}], v[{t+2}:{t+3}], v[{t}:{t+1}]")
    for (r, b, t, d) in prs: A(f"v_exp_f32 v{t+2}, v{t+2}\nv_exp_f32 v{t+3}, v{t+3}")
    for (r, b, t, d) in prs: A(f"v_pk_add_f32 v[{t+2}:{t+3}], v[{t+2}:{t+3}], v[30:31] op_sel:[0,0] op_sel_hi:[1,0]")
    for (r, b, t, d) in prs: A(f"v_rcp_f32 v{t+2}, v{t+2}\nv_rcp_f32 v{t+3}, v{t+3}")
    for (r, b, t, d) in prs: A(f"v_pk_mul_f32 v[{t}:{t+1}], v[{t}:{t+1}], v[{t+2}:{t+3}]")
    for (r, b, t, d) in prs: A(f"v_cvt_pk_bf16_f32 v{d}, v{t}, v{t+1}")
def gelu_sc(prs):
    F = []
    def each(fn, c=4):
        for p in prs:
            for h in range(2): F.append((fn(p, h), c))
    each(lambda p, h: rnd(p[2]+h, p[0]+h))
    each(lambda p, h: f"v_add_f32 v{p[2]+h}, v{p[2]+h}, v{p[1]+h}")
    each(lambda p, h: rnd(p[2]+h, p[2]+h))
    each(lambda p, h: f"v_mul_f32 v{p[2]+2+h}, v{p[2]+h}, v{p[2]+h}")
    each(lambda p, h: f"v_fma_f32 v{p[2]+2+h}, v{p[2]+2+h}, v28, v29")
    each(lambda p, h: f"v_mul_f32 v{p[2]+2+h}, v{p[2]+2+h}, v{p[2]+h}")
    each(lambda p, h: f"v_exp_f32 v{p[2]+2+h}, v{p[2]+2+h}", 8)
    each(lambda p, h: f"v_add_f32 v{p[2]+2+h}, 1.0, v{p[2]+2+h}")
    each(lambda p, h: f"v_rcp_f32 v{p[2]+2+h}, v{p[2]+2+h}", 8)
    each(lambda p, h: f"v_mul_f32 v{p[2]+h}, v{p[2]+h}, v{p[2]+2+h}")
    for p in prs: F.append((f"v_cvt_pk_bf16_f32 v{p[3]}, v{p[2]}, v{p[2]+1}", 4))
    return F

def gen_k1():
    kernel_begin("k1_kernel")
    A("s_cmp_ge_u32 s2, 256\ns_cbranch_scc1 K1_end")
    A(f"s_load_dwordx2 s[56:57], s[0:1], {KA['x']}")
    A(f"s_load_dwordx2 s[52:53], s[0:1], {KA['ws']}")
    A(f"s_load_dwordx4 s[44:47], s[0:1], {KA['bre']}")
    A(f"s_load_dwordx4 s[48:51], s[0:1], {KA['w1']}")
    A(f"s_load_dwordx2 s[54:55], s[0:1], {KA['out']}")
    A(f"s_load_dwordx2 s[58:59], s[0:1], {KA['dsk']}")
    A(f"s_load_dwordx4 s[4:7], s[0:1], {KA['cre']}")
    A(f"s_load_dwordx4 s[20:23], s[0:1], {KA['w2']}")
    A(f"s_load_dwordx4 s[76:79], s[0:1], {KA['lre']}")
    A(f"s_load_dwordx2 s[80:81], s[0:1], {KA['ldt']}")
    A("v_lshrrev_b32 v2, 6, v0\nv_and_b32 v1, 63, v0")
    A("v_readfirstlane_b32 s32, v2")
    if CPF:
        A("s_getpc_b64 s[82:83]\nK1_pc:")
        A("s_cmp_lt_u32 s32, 4\ns_cbranch_scc1 K1_nopf")
        A("s_lshr_b32 s62, s2, 2\ns_andn2_b32 s62, s62, 1\ns_add_u32 s62, s62, s32\ns_and_b32 s62, s62, 7\ns_lshl_b32 s62, s62, 13")
        A("v_lshlrev_b32 v3, 7, v1\nv_add_u32 v3, s62, v3\nv_min_u32 v3, K1_code_end-K1_pc-4, v3")
        A("global_load_dword v60, v3, s[82:83]")
        A("K1_nopf:")
    if MAP == 0:
        A("s_and_b32 s33, s2, 7\ns_lshr_b32 s34, s2, 3")
        A("s_and_b32 s35, s34, 3\ns_bfe_u32 s36, s34, 0x20002")
        A("s_add_u32 s88, s35, s36")
        A("s_and_b32 s62, s33, 1\ns_lshl_b32 s62, s62, 2\ns_add_u32 s39, s62, s35")
        A("s_lshr_b32 s62, s33, 1\ns_lshl_b32 s62, s62, 2\ns_add_u32 s40, s62, s36")
        A("s_add_u32 s43, s62, s35")
        A("s_and_b32 s62, s33, 3\ns_lshl_b32 s62, s62, 2\ns_add_u32 s41, s62, s35")
        A("s_lshr_b32 s62, s33, 2\ns_lshl_b32 s62, s62, 2\ns_add_u32 s42, s62, s36")
        A("s_lshr_b32 s62, s34, 4\ns_xor_b32 s62, s62, s33\ns_and_b32 s62, s62, 1\ns_xor_b32 s62, s62, 1\ns_lshl_b32 s62, s62, 2\ns_add_u32 s37, s62, s36")
        A("s_lshr_b32 s34, s34, 4\ns_and_b32 s3, s2, 127")
    else:
        A("s_lshr_b32 s63, s2, 3\ns_bfe_u32 s62, s2, 0x20001")
        A("s_and_b32 s35, s63, 3\ns_lshr_b32 s36, s63, 2")
        A("s_lshl_b32 s88, s35, 1\ns_add_u32 s88, s88, s36")
        A("s_lshl_b32 s3, s62, 5\ns_add_u32 s3, s3, s63")
        A("s_lshl_b32 s41, s62, 2\ns_add_u32 s41, s41, s35\ns_mov_b32 s42, s36")
        A("s_mov_b32 s43, s41\ns_mov_b32 s37, s36")
        A("s_and_b32 s39, s62, 1\ns_lshl_b32 s39, s39, 2\ns_add_u32 s39, s39, s35")
        A("s_lshr_b32 s40, s62, 1\ns_lshl_b32 s40, s40, 3\ns_add_u32 s40, s40, s36")
        A(f"s_and_b32 s34, s2, 1\ns_xor_b32 s33, s34, {PPAR}")
    A("s_lshl_b32 s38, s43, 3\ns_add_u32 s38, s38, s37")
    A("s_mov_b32 s99, 0")
    A("s_lshr_b32 s60, s32, 1\ns_and_b32 s61, s32, 1")
    A("s_waitcnt lgkmcnt(0)")
    srd(8, 44, 2097152)
    srd(12, 46, 2097152)
    srd(16, 48, 14680064)
    srd(24, 52, WS_SIZE)
    srd(28, 50, 7168)
    stamp(0)
    A("s_cmp_ge_u32 s32, 4\ns_cbranch_scc1 K1_prod")
    ln_issue()
    A(f"s_lshl_b32 s85, s42, 8\ns_lshl_b32 s62, s41, 4\ns_add_u32 s85, s85, s62\ns_lshl_b32 s62, s32, 2\ns_add_u32 s85, s85, s62\ns_add_u32 s85, s85, {UF}")
    A(f"s_lshl_b32 s74, s38, 2\ns_add_u32 s74, s74, s32\ns_lshl_b32 s74, s74, 6\ns_add_u32 s74, s74, {XF}")
    A("s_lshl_b32 s62, s40, 6\ns_lshl_b32 s63, s61, 5\ns_add_u32 s62, s62, s63")
    A("s_lshl_b32 s70, s39, 1\ns_add_u32 s70, s70, s60")
    A(f"s_lshl_b32 s75, s70, 8\ns_lshl_b32 s63, s40, 3\ns_add_u32 s75, s75, s63\ns_lshl_b32 s63, s61, 2\ns_add_u32 s75, s75, s63\ns_add_u32 s75, s75, {HTF}")
    A(f"s_lshl_b32 s63, s62, 3\ns_lshl_b32 s64, s70, 13\ns_add_u32 s63, s63, s64\ns_add_u32 s63, s63, {AGG}")
    A("s_cmp_eq_u32 s34, 1\ns_cselect_b32 s85, s75, s85\ns_cselect_b32 s74, s63, s74\ns_cselect_b32 s63, -1, 0\ns_cselect_b32 s64, 0xffff, 1\ns_mov_b32 s65, 0")
    A("v_mov_b32 v22, 0\nv_mov_b32 v4, s63\nv_mov_b32 v5, s63\nv_mov_b32 v6, s63\nv_mov_b32 v7, s63\nv_lshlrev_b32 v8, 4, v1")
    A("s_mov_b64 exec, 1\nbuffer_store_dword v22, v22, s[24:27], s85 offen sc1\ns_mov_b64 exec, s[64:65]\nbuffer_store_dwordx4 v[4:7], v8, s[24:27], s74 offen sc1\ns_mov_b64 exec, -1")
    ln_compute(2)
    A("s_cmp_eq_u32 s34, 1\ns_cbranch_scc1 K1_g1")
    A("s_mul_i32 s62, s41, 448")
    A("s_lshl_b32 s63, s60, 8\ns_add_u32 s63, s63, s62")
    A("v_lshrrev_b32 v16, 4, v1\nv_lshlrev_b32 v17, 3, v16")
    for lb in range(6):
        A(f"buffer_load_dwordx2 v[{240+2*lb}:{241+2*lb}], v17, s[28:31], s63 offen offset:{32*lb}")
    for lb in (6, 7):
        A(f"buffer_load_dwordx2 v[{240+2*lb}:{241+2*lb}], v17, s[28:31], s62 offen offset:{32*lb}")
    srd(8, 22, 4096)
    A("s_lshl_b32 s62, s43, 8\ns_lshl_b32 s63, s61, 7\ns_add_u32 s62, s62, s63\nv_and_b32 v16, 15, v1\nv_lshlrev_b32 v16, 1, v16")
    for nb in range(4):
        A(f"buffer_load_ushort v{24+nb}, v16, s[8:11], s62 offen offset:{32*nb}")
    A("s_lshl_b32 s71, s60, 1")
    C3.addr_setup(sq=71)
    zero_regs(ACC, 112)
    A(f"s_mul_i32 s70, s42, {56*16384}\ns_lshl_b32 s72, s61, 13\ns_add_u32 s70, s70, s72\ns_add_u32 s70, s70, {U}")
    A("s_mul_i32 s72, s41, 7\ns_lshl_b32 s73, s60, 2\ns_add_u32 s73, s73, s72")
    for pr in range(4):
        if pr < 3: A(f"s_add_u32 s74, s73, {pr}")
        else: A("s_add_u32 s74, s72, 3")
        A(f"s_lshr_b32 s75, s74, 1\ns_lshl_b32 s75, s75, 14\ns_and_b32 s74, s74, 1\ns_lshl_b32 s74, s74, 10\ns_add_u32 s74, s74, s75\ns_add_u32 s{76+pr}, s74, s70")
    for nb in range(4):
        A(f"s_xor_b32 s{80+nb}, s71, {nb}\ns_lshl_b32 s{80+nb}, s{80+nb}, 11")
    A(f"v_mov_b32 v28, {f32(GC1)}\nv_mov_b32 v29, {f32(GC0)}\nv_mov_b32 v30, 1.0\nv_mov_b32 v31, 1.0\nv_lshlrev_b32 v21, 4, v1")
    A(f"s_mov_b32 s86, {NB3-1}\ns_mov_b32 s87, 3")
    A("s_barrier")
    C3.loop("K1_g3", 32, xbar=True)
    A("s_waitcnt vmcnt(0)")
    stamp(1)
    BI = lambda lb: (32 + 4*lb) if lb < 4 else (112 + 4*(lb-4))
    for lb in range(8):
        for h in range(2):
            A(f"v_lshlrev_b32 v{BI(lb)+2*h}, 16, v{240+2*lb+h}\nv_and_b32 v{BI(lb)+2*h+1}, 0xffff0000, v{240+2*lb+h}")
    def group(pr, nb, TB):
        prs = []
        blk0 = (2*pr)*4 + nb if pr < 3 else 24 + nb
        st = ACC + blk0*4
        for e in range(2):
            lb = 2*pr + e
            blk = lb*4 + nb if pr < 3 else 24 + e*2 + nb
            for h in range(2):
                prs.append((ACC + blk*4 + 2*h, BI(lb) + 2*h, TB + (2*e+h)*4, st + 2*e + h))
        return prs, f"s_add_u32 s84, s{76+pr}, s{80+nb}\nbuffer_store_dwordx4 v[{st}:{st+3}], v21, s[24:27], s84 offen sc1"
    GL = [(pr, nb) for pr in range(4) for nb in range(4 if pr < 3 else 2)]
    for gi, (pr, nb) in enumerate(GL[:NP1]):
        prs, stq = group(pr, nb, 64 + (gi & 1)*16)
        gelu_pk(prs)
        A(stq)
    stamp(2)
    for nb in range(4):
        A(f"v_lshlrev_b32 v{240+4*nb}, 16, v{24+nb}")
        for i in range(1, 4): A(f"v_lshlrev_b32 v{240+4*nb+i}, 16, v{24+nb}")
    pb_setup(False, N3A + NB3)
    CB.addr_setup()
    CA.addr_setup()
    stamp(5, t=(2, 3, 4))
    CA.start()
    stamp(6, t=(2, 3, 4))
    F = []
    for pr, nb in GL[NP1:]:
        prs, stq = group(pr, nb, 96)
        F += gelu_sc(prs) + [(stq, 8)]
    tot = max(sum(c for _, c in F), 1)
    parts = [[] for _ in range(2*NUN)]
    acc = 0
    for x in F:
        parts[min(int(acc*NGS/tot), NGS-1)].append(x); acc += x[1]
    parts[2*NUN-1].append(("s_waitcnt vmcnt(0)\n" + flag_store(85), 4))
    for i in range(NUN):
        CA.substep(0, CA.reads(1), False, False, fill=parts[2*i], csrc=(lambda mb, nb: f"v[{240+4*nb}:{243+4*nb}]") if i == 0 else None)
        CA.substep(1, CA.reads(0), True, True, fill=parts[2*i+1])
    stamp(4, t=(2, 3, 4))
    A(f"s_mov_b32 s92, {N3A-NUN-1}\ns_branch K1_yA_loop")
    A("K1_prod:\ns_cmp_eq_u32 s34, 1\ns_cbranch_scc1 K1_g1prod")
    voff_T224(7168, 8)
    voff_T128(2048, 16)
    A("s_mul_i32 s86, s41, 448")
    A(f"s_lshl_b32 s89, s42, 8\ns_add_u32 s89, s89, {H2}")
    itA = [(16, 8 + j % 7, 81, (j//7)*16*7168, j*1024) for j in range(28)]
    itB = [(24, 16 + (j & 1), 82, j*4*2048, C3.AB + j*1024) for j in range(16)]
    def st3():
        rot_index()
        A(f"s_mul_i32 s81, s85, {64*7168}\ns_add_u32 s81, s81, s86\ns_lshl_b32 s82, s85, 17\ns_add_u32 s82, s82, s89")
    allit = itA + itB
    A(f"s_and_b32 s78, s33, 1\ns_mul_i32 s66, s78, {N1A}\ns_mul_i32 s78, s78, {NB1}\ns_sub_u32 s78, s78, {N3A}\ns_mov_b32 s79, {(N3A+NB3)//RG*RG}\ns_mov_b32 s69, {(N3A+NB3)//4*4}")
    A(f"s_mov_b32 s67, {N3A-4}\ns_mov_b32 s68, {NB3}")
    A("s_cmp_eq_u32 s32, 5\ns_cbranch_scc1 K1_g3p1")
    isws = lambda x: x[0] == 24
    def pre3():
        if not PT3: return
        A(f"v_lshlrev_b32 v20, 7, v1\ns_lshl_b32 s75, s3, 13\ns_add_u32 s75, s75, {P('PT3_SKIP', 2)*128*8192}")
        for i in range(PT3):
            A(f"s_waitcnt vmcnt({P('PT_INF', 3)})\nbuffer_load_dword v21, v20, s[16:19], s75 offen\ns_add_u32 s75, s75, {128*8192}")
    producer("K1_g3p0", C3, allit[:22], 32, st3, isws, False, pre3, E3)
    voff_N(2048, 8)
    A("s_branch K1_pb_a\nK1_g3p1:")
    producer("K1_g3p1", C3, allit[22:], 32, st3, isws, True, None, E3)
    A("s_branch K1_pb_b")
    A("K1_g1:")
    srd(12, 76, 2048); srd(16, 78, 2048); srd(28, 80, 2048)
    A("v_and_b32 v2, 15, v1\nv_lshlrev_b32 v2, 1, v2\ns_lshl_b32 s63, s62, 1")
    for ch in range(2):
        for i, sr in enumerate((12, 16, 28)):
            A(f"buffer_load_ushort v{32+4*ch+i}, v2, s[{sr}:{sr+3}], s63 offen offset:{32*ch}")
    C1.addr_setup()
    zero_regs(ACC, 128)
    A(f"s_mov_b32 s86, {NB1-4}\ns_mov_b32 s87, 0")
    A("s_barrier")
    A("s_waitcnt vmcnt(0)")
    for ch in range(2): coef(32+4*ch, 16+8*ch, 40)
    C1.loop("K1_g1", 16, xbar=True)
    stamp(1)
    A("s_nop 7\ns_waitcnt vmcnt(0)")
    CO = [16, 24]
    zre = lambda ch, t: ACC + ((t//4)*4 + 2*ch)*4 + t % 4
    zim = lambda ch, t: ACC + ((t//4)*4 + 2*ch + 1)*4 + t % 4
    cur = [(zre(0, 0), zim(0, 0)), (zre(1, 0), zim(1, 0))]
    bufs = [[(32, 33), (34, 35)], [(36, 37), (38, 39)]]
    for t in range(1, 32):
        for ch in range(2):
            n = bufs[ch][t % 2]; c = cur[ch]; a = CO[ch]
            A(f"v_fma_f32 v{n[0]}, v{a}, v{c[0]}, v{zre(ch,t)}\nv_fma_f32 v{n[1]}, v{a}, v{c[1]}, v{zim(ch,t)}")
        for ch in range(2):
            n = bufs[ch][t % 2]; c = cur[ch]; a = CO[ch]
            A(f"v_fma_f32 v{n[0]}, -v{a+1}, v{c[1]}, v{n[0]}\nv_fma_f32 v{n[1]}, v{a+1}, v{c[0]}, v{n[1]}")
            cur[ch] = n
    A("v_and_b32 v2, 15, v1\nv_lshlrev_b32 v2, 2, v2\nv_lshrrev_b32 v3, 4, v1")
    for ch in range(2):
        for g in range(4):
            for h in range(2):
                A(f"ds_bpermute_b32 v{40+ch*8+2*g+h}, v2, v{cur[ch][h]} offset:{64*g}")
    for ch in range(2):
        a = CO[ch] + 4; d = 56 + ch*4
        cmul(d, d+1, a, a+1, a, a+1)
        cmul(d+2, d+3, d, d+1, a, a+1)
    A("v_lshlrev_b32 v8, 2, v2")
    A("s_lshl_b32 s70, s39, 1\ns_add_u32 s70, s70, s60")
    A(f"s_lshl_b32 s71, s62, 3\ns_add_u32 s71, s71, {AGG}")
    A("s_lshl_b32 s72, s70, 13\ns_add_u32 s72, s72, s71")
    A("v_mov_b32 v4, 0x7fc00000")
    A("s_waitcnt lgkmcnt(0)")
    for ch in range(2):
        e = 40 + ch*8; a = CO[ch] + 4
        cfma(e+2, e+3, a, a+1, e, e+1, e+2, e+3)
        cfma(e+4, e+5, a, a+1, e+2, e+3, e+4, e+5)
        cfma(e+6, e+7, a, a+1, e+4, e+5, e+6, e+7)
    for i, r in enumerate((46, 47, 54, 55)):
        A(f"v_cmp_eq_u32 vcc, -1, v{r}\ns_nop 1\nv_cndmask_b32 v{76+i}, v{r}, v4, vcc")
    A("s_mov_b64 s[74:75], exec\ns_mov_b64 exec, 0xffff")
    A("buffer_store_dwordx4 v[76:79], v8, s[24:27], s72 offen sc1")
    A("s_mov_b64 exec, s[74:75]")
    A("s_sub_u32 s72, s70, 1\nv_sub_u32 v4, s72, v3\nv_lshlrev_b32 v4, 13, v4\nv_add_u32 v4, v4, v8\nv_mov_b32 v5, 0x40000000")
    for m in range(4):
        A(f"v_subrev_u32 v6, {m*32768}, v4\nv_cmp_gt_i32 vcc, 0, v6\ns_nop 1\nv_cndmask_b32 v{10+m}, v6, v5, vcc")
    SETS = [96, 112][:NPOLL]
    def poll_issue(s):
        for m in range(4):
            A(f"buffer_load_dwordx4 v[{s+4*m}:{s+4*m+3}], v{10+m}, s[24:27], s71 offen sc1")
    poll_issue(SETS[0])
    A("v_mov_b32 v32, 0\nv_mov_b32 v33, 0\nv_mov_b32 v34, 0\nv_mov_b32 v35, 0\nv_mov_b32 v36, 1.0\nv_mov_b32 v37, 0\nv_mov_b32 v38, 1.0\nv_mov_b32 v39, 0")
    for ch in range(2):
        a = CO[ch] + 6
        cmul(64+2*ch, 65+2*ch, a, a+1, a, a+1)
        cmul(68+2*ch, 69+2*ch, 64+2*ch, 65+2*ch, a, a+1)
        cmul(72+2*ch, 73+2*ch, 64+2*ch, 65+2*ch, 64+2*ch, 65+2*ch)
    A("v_mov_b32 v88, 1.0\nv_mov_b32 v89, 0\nv_mov_b32 v90, 1.0\nv_mov_b32 v91, 0")
    for g in range(1, 4):
        A(f"v_cmp_eq_u32 vcc, {g}, v3\ns_nop 1")
        for ch in range(2):
            pr = 40 + ch*8 + 2*(g-1)
            mr = CO[ch] + 4 if g == 1 else 56 + ch*4 + 2*(g-2)
            gr = CO[ch] + 6 if g == 1 else 64 + 4*(g-2) + 2*ch
            A(f"v_cndmask_b32 v{32+2*ch}, v{32+2*ch}, v{pr}, vcc\nv_cndmask_b32 v{33+2*ch}, v{33+2*ch}, v{pr+1}, vcc")
            A(f"v_cndmask_b32 v{36+2*ch}, v{36+2*ch}, v{mr}, vcc\nv_cndmask_b32 v{37+2*ch}, v{37+2*ch}, v{mr+1}, vcc")
            A(f"v_cndmask_b32 v{88+2*ch}, v{88+2*ch}, v{gr}, vcc\nv_cndmask_b32 v{89+2*ch}, v{89+2*ch}, v{gr+1}, vcc")
    base_setup()
    A("v_lshlrev_b32 v9, 4, v1\nv_xor_b32 v14, 64, v9")
    A(f"s_lshl_b32 s76, s70, 19\ns_lshl_b32 s73, s40, 14\ns_add_u32 s76, s76, s73\ns_lshl_b32 s73, s61, 13\ns_add_u32 s76, s76, s73\ns_add_u32 s76, s76, {HT}")
    A(f"s_add_u32 s77, s76, {16*16384}\ns_add_u32 s78, s76, 4096\ns_add_u32 s79, s77, 4096")
    for s in SETS[1:]:
        A("s_sleep 2")
        poll_issue(s)
    A("s_mov_b32 s73, 0x40000")
    A("K1_retry:")
    for si, s in enumerate(SETS):
        A(f"s_waitcnt vmcnt({4*(len(SETS)-1)})")
        A(f"v_max3_u32 v4, v{s}, v{s+1}, v{s+2}")
        for q in range(3, 15, 2): A(f"v_max3_u32 v4, v4, v{s+q}, v{s+q+1}")
        A(f"v_max_u32 v4, v4, v{s+15}")
        A(f"v_cmp_eq_u32 vcc, -1, v4\ns_cmp_eq_u64 vcc, 0\ns_cbranch_scc1 K1_use{si}")
        if len(SETS) == 1: A("s_sleep 4")
        poll_issue(s)
    A("s_sub_u32 s73, s73, 1\ns_cmp_lg_u32 s73, 0\ns_cbranch_scc1 K1_retry")
    A("s_waitcnt vmcnt(0)")
    for si, s in enumerate(SETS):
        A(f"K1_use{si}:")
        for ch in range(2):
            a4 = 72 + 2*ch
            cfma(84+2*ch, 85+2*ch, a4, a4+1, s+12+2*ch, s+13+2*ch, s+8+2*ch, s+9+2*ch)
            cfma(80+2*ch, 81+2*ch, a4, a4+1, 84+2*ch, 85+2*ch, s+4+2*ch, s+5+2*ch)
            cfma(84+2*ch, 85+2*ch, a4, a4+1, 80+2*ch, 81+2*ch, s+2*ch, s+1+2*ch)
        if si < len(SETS)-1: A("s_branch K1_gotall")
    A("K1_gotall:")
    for ch in range(2):
        cmul(40+2*ch, 41+2*ch, 88+2*ch, 89+2*ch, 84+2*ch, 85+2*ch)
    for op in ("v_permlane32_swap_b32", "v_permlane16_swap_b32"):
        for i in range(4): A(f"v_mov_b32 v{80+i}, v{40+i}")
        A("s_nop 1")
        for i in range(4): A(f"{op} v{40+i}, v{80+i}")
        A("s_nop 1")
        for i in range(4): A(f"v_add_f32 v{40+i}, v{40+i}, v{80+i}")
    stamp(2, t=(2, 3, 4))
    for ch in range(2):
        cfma(44+4*ch, 45+4*ch, 36+2*ch, 37+2*ch, 40+2*ch, 41+2*ch, 32+2*ch, 33+2*ch)
    cur = [(44, 45), (48, 49)]; nxt = [(46, 47), (50, 51)]
    for q in range(4):
        stg = 64 + (q % 2)*16
        for e in range(4):
            for u in range(2):
                t = q*8 + 2*e + u
                for ch in range(2):
                    a = CO[ch]; n = nxt[ch]; c = cur[ch]
                    A(f"v_fma_f32 v{n[0]}, v{a}, v{c[0]}, v{zre(ch,t)}\nv_fma_f32 v{n[1]}, v{a}, v{c[1]}, v{zim(ch,t)}")
                for ch in range(2):
                    a = CO[ch]; n = nxt[ch]; c = cur[ch]
                    A(f"v_fma_f32 v{n[0]}, -v{a+1}, v{c[1]}, v{n[0]}\nv_fma_f32 v{n[1]}, v{a+1}, v{c[0]}, v{n[1]}")
                    cur[ch], nxt[ch] = n, c
                for ch in range(2):
                    a = CO[ch]; c = cur[ch]; o = 52 + ch*4 + 2*u
                    A(f"v_mul_f32 v{o}, v{a+2}, v{c[0]}\nv_mul_f32 v{o+1}, -v{a+2}, v{c[1]}")
                for ch in range(2):
                    a = CO[ch]; c = cur[ch]; o = 52 + ch*4 + 2*u
                    A(f"v_fma_f32 v{o}, -v{a+3}, v{c[1]}, v{o}\nv_fma_f32 v{o+1}, -v{a+3}, v{c[0]}, v{o+1}")
            for ch in range(2):
                o = 52 + ch*4
                A(f"v_cvt_pk_bf16_f32 v{stg+ch*8+e}, v{o}, v{o+2}\nv_cvt_pk_bf16_f32 v{stg+ch*8+4+e}, v{o+1}, v{o+3}")
        for i, sr in enumerate((76, 77, 78, 79)):
            A(f"buffer_store_dwordx4 v[{stg+4*i}:{stg+4*i+3}], v{14 if q & 1 else 9}, s[24:27], s{sr} offen offset:{1024*q} sc1")
        if BASE_MODE == 1:
            if q == BXQ: base_load_x()
            if q == 1: base_load_xn()
    stamp(3, t=(2, 3, 4))
    if BASE_MODE == 1:
        pb_setup(True, N1A + NB1)
        A("s_waitcnt vmcnt(8)")
        for i in range(2):
            A(f"v_lshlrev_b32 v{DU+2*i}, 16, v{DR2+i}\nv_and_b32 v{DU+2*i+1}, 0xffff0000, v{DR2+i}")
        for nb in range(4):
            if nb == FLAG_AT:
                A("s_waitcnt vmcnt(0)")
                A(flag_store(85))
                stamp(4, t=(2, 3, 4))
            base_round(nb)
    else:
        A(f"buffer_load_dwordx2 v[{DR2}:{DR2+1}], v5, s[12:15], s82 offen")
        def ldk(k):
            if k: A(f"s_add_u32 s80, s80, {4*2048}")
            A(f"buffer_load_dwordx2 v[{XR+2*k}:{XR+2*k+1}], v15, s[8:11], s80 offen")
            A(f"s_add_u32 s83, s81, {(16*(k & 7) + 4*(k >> 3))*2048}")
            r = xn_reg(k)
            A(f"buffer_load_dwordx2 v[{r}:{r+1}], v15, s[24:27], s83 offen")
        for k in range(FLAG_AT): ldk(k)
        pb_setup(True, N1A + NB1)
        A(f"s_waitcnt vmcnt({1 + 2*FLAG_AT})")
        A(flag_store(85))
        for k in range(FLAG_AT, 16): ldk(k)
        stamp(4, t=(2, 3, 4))
        for nb in range(4):
            A(f"s_waitcnt vmcnt({24 - 8*nb})")
            if nb == 0:
                for i in range(2):
                    A(f"v_lshlrev_b32 v{DU+2*i}, 16, v{DR2+i}\nv_and_b32 v{DU+2*i+1}, 0xffff0000, v{DR2+i}")
            base_round(nb)
    CB.addr_setup()
    CA.addr_setup()
    A("s_waitcnt lgkmcnt(0)")
    stamp(5)
    CA.start()
    stamp(6)
    A(f"s_mov_b32 s92, {N1A-1}")
    CA.body("K1_yA")
    CA.substep(0, CA.reads(1), False, False)
    CA.substep(1, CB.reads(0), True, True, updv=False)
    stamp(7)
    A("s_mov_b32 s92, s86\ns_mov_b32 s91, s87")
    CB.body("K1_yB")
    A("s_cmp_ge_u32 s91, 2\ns_cbranch_scc1 K1_yB_tail")
    A("s_cmp_eq_u32 s91, 1\ns_cbranch_scc1 K1_yB_ph1")
    A("buffer_load_dword v24, v22, s[24:27], s70 offen sc1")
    A("s_mov_b32 s92, 2\ns_mov_b32 s91, 1\ns_branch K1_yB_loop")
    A("K1_yB_ph1:")
    A("s_waitcnt vmcnt(0)\nv_readfirstlane_b32 s71, v24\ns_mov_b32 s92, 1\ns_mov_b32 s91, 2\ns_cmp_lg_u32 s71, 1\ns_cbranch_scc1 K1_yB_loop")
    def pd_loads():
        for i in range(16):
            if i % 4 == 0: A(f"s_add_u32 s72, s69, {i*1024}")
            A(f"buffer_load_dwordx4 v[{PD+4*i}:{PD+4*i+3}], v21, s[24:27], s72 offen offset:{(i%4)*1024} sc1")
    pd_loads()
    A("s_branch K1_yB_loop")
    A("K1_yB_tail:")
    CB.tail()
    stamp(8)
    transpose_acc()
    A("s_cmp_eq_u32 s91, 3\ns_cbranch_scc1 K1_send")
    A("s_cmp_eq_u32 s71, 1\ns_cbranch_scc1 K1_have")
    A("s_mov_b32 s73, 0x40000")
    A("K1_xpoll:")
    A("buffer_load_dword v24, v22, s[24:27], s70 offen sc1")
    A("s_waitcnt vmcnt(0)\nv_readfirstlane_b32 s71, v24\ns_cmp_eq_u32 s71, 1\ns_cbranch_scc1 K1_xok")
    A("s_sleep 1\ns_sub_u32 s73, s73, 1\ns_cmp_lg_u32 s73, 0\ns_cbranch_scc1 K1_xpoll")
    A("K1_xok:")
    pd_loads()
    A("K1_have:")
    stamp(9)
    A("s_lshl_b32 s65, s62, 12\ns_lshl_b32 s66, s64, 2\ns_add_u32 s65, s65, s66")
    if STAMP: A("s_waitcnt vmcnt(0)")
    for k in range(16):
        if k: A(f"s_add_u32 s65, s65, {4*4096}")
        A(f"s_waitcnt vmcnt(15) lgkmcnt({min(15-k, 15)})")
        a = FR + 4*k; r = PD + 4*k
        A(f"v_pk_add_f32 v[{a}:{a+1}], v[{a}:{a+1}], v[{r}:{r+1}]\nv_pk_add_f32 v[{a+2}:{a+3}], v[{a+2}:{a+3}], v[{r+2}:{r+3}]")
        A(f"buffer_store_dwordx4 v[{a}:{a+3}], v20, s[28:31], s65 offen{OUTSC}")
    stamp(10)
    A("s_endpgm")
    A("K1_send:")
    for k in range(16):
        a = FR + 4*k
        if k % 4 == 0: A(f"s_add_u32 s72, s69, {k*1024}")
        A(f"s_waitcnt lgkmcnt({15-k})")
        A(f"buffer_store_dwordx4 v[{a}:{a+3}], v21, s[24:27], s72 offen offset:{(k%4)*1024} sc1")
    A("s_waitcnt vmcnt(0)")
    A("s_mov_b64 exec, 1")
    A("buffer_store_dword v23, v22, s[24:27], s70 offen sc1")
    A("s_mov_b64 exec, -1")
    stamp(9)
    A("s_endpgm")
    A("K1_g1prod:")
    voff_N(2048, 8)
    A(f"s_lshl_b32 s86, s39, 19")
    if XN: A(f"s_add_u32 s86, s86, {XN}")
    A("s_lshl_b32 s89, s40, 17")
    itA = [(24, 8 + (j & 1), 81, j*8*2048, j*1024) for j in range(32)]
    itB = [(12 if (j >> 1) & 1 else 8, 8 + (j & 1), 82, ((j >> 3)*32 + ((j >> 2) & 1)*16 + (j & 1)*8)*2048, C1.AB + j*1024) for j in range(16)]
    def st1():
        rot_index()
        A("s_lshl_b32 s83, s85, 7\ns_add_u32 s81, s83, s86\ns_add_u32 s82, s83, s89")
    allit = itA + itB
    A(f"s_and_b32 s78, s33, 1\ns_mul_i32 s66, s78, {N3A}\ns_mul_i32 s78, s78, {NB3}\ns_sub_u32 s78, s78, {N1A}\ns_mov_b32 s79, {(N1A+NB1)//RG*RG}\ns_mov_b32 s69, {(N1A+NB1)//4*4}")
    A(f"s_mov_b32 s67, {N1A-4}\ns_mov_b32 s68, {NB1}")
    A("v_lshlrev_b32 v10, 7, v1\nv_and_b32 v11, 31, v1\nv_lshlrev_b32 v11, 7, v11\ns_mov_b32 s70, s3")
    A("s_cmp_eq_u32 s32, 5\ns_cbranch_scc1 K1_g1p1")
    tw1 = [(16, 10, 75, 128*8192, None)] if T1 else []
    A(f"s_lshl_b32 s75, s70, 13\ns_add_u32 s75, s75, {T1_SKIP*128*8192}")
    def tb(n0, n):
        A("s_bitcmp1_b32 s3, 6\ns_cselect_b32 s28, s12, s8\ns_cselect_b32 s29, s13, s9\ns_mov_b32 s30, 2097152\ns_mov_b32 s31, 0x20000")
        A(f"s_and_b32 s74, s3, 63\ns_lshl_b32 s74, s74, 15\ns_add_u32 s74, s74, {n0*8192}")
        for i in range(n):
            A(f"buffer_load_dword v21, v10, s[28:31], s74 offen\ns_add_u32 s74, s74, 8192")
        return n
    TB0 = P("TB0", 0); TB1 = P("TB1", 0)
    def pre1():
        if TB1: tb(TB0, TB1)
        for i in range(PT1):
            A(f"s_waitcnt vmcnt({P('PT_INF', 3)})\nbuffer_load_dword v21, v10, s[16:19], s75 offen\ns_add_u32 s75, s75, {128*8192}")
    producer("K1_g1p0", C1, allit[:24] + tw1, 16, st1, isws, False, pre1, E1, lambda: tb(0, TB0) if TB0 else 0)
    itC = [(8, 8 + (j & 1), 81, j*8*2048, j*1024) for j in range(16)]
    itU = [(24, 18, 81, j*1024, j*1024) for j in range(16)]
    itH = [(24, 18, 82, j*1024, CB.AB + j*1024) for j in range(16)]
    itW = [(16, 16 + (j & 1), 82, j*4*4096, CB.AB + j*1024) for j in range(16)]
    def ya_index():
        rot_index()
        A("s_add_u32 s85, s85, s66\ns_lshr_b32 s83, s85, 3\ns_lshl_b32 s83, s83, 2\ns_and_b32 s74, s85, 3\ns_add_u32 s83, s83, s74")
        A("s_bitcmp1_b32 s85, 2")
    def stC():
        ya_index()
        A("s_cselect_b32 s8, s6, s4\ns_cselect_b32 s9, s7, s5")
        A("s_lshl_b32 s83, s83, 7\ns_add_u32 s81, s86, s83")
    UN = [0]
    def need_flags():
        UN[0] += 1; tag = f"K1_uf{UN[0]}"
        A(f"s_andn2_b64 s[74:75], s[70:71], s[76:77]\ns_cbranch_scc0 {tag}_ok")
        A("s_mov_b32 s73, 0x40000")
        A(f"{tag}_poll:")
        A(f"buffer_load_dword v20, v19, s[24:27], s72 offen sc1")
        A("s_waitcnt vmcnt(0)")
        A(f"v_cmp_eq_u32 s[76:77], 1, v20\ns_nop 0\ns_andn2_b64 s[74:75], s[70:71], s[76:77]\ns_cbranch_scc0 {tag}_ok")
        A(f"s_sleep 2\ns_sub_u32 s73, s73, 1\ns_cmp_lg_u32 s73, 0\ns_cbranch_scc1 {tag}_poll")
        A(f"{tag}_ok:")
    def stU():
        rot_index(79)
        A("s_add_u32 s85, s85, s78\ns_lshl_b32 s81, s85, 14\ns_add_u32 s81, s81, s86")
        A("s_mul_i32 s83, s85, 18726\ns_lshr_b32 s74, s83, 16\ns_add_u32 s83, s83, 9363\ns_lshr_b32 s83, s83, 16")
        A("s_lshl_b32 s74, s74, 2\ns_lshl_b32 s83, s83, 2\ns_lshl_b64 s[70:71], 15, s74\ns_lshl_b64 s[74:75], 15, s83\ns_or_b64 s[70:71], s[70:71], s[74:75]")
        need_flags()
    def stH():
        ya_index()
        A("s_cselect_b32 s82, 16, 0\ns_add_u32 s82, s82, s83\ns_lshl_b32 s82, s82, 14\ns_add_u32 s82, s82, s89")
        A("s_lshl_b32 s83, s83, 1\ns_lshl_b64 s[70:71], 3, s83")
        need_flags()
    def stW():
        rot_index(79)
        A("s_add_u32 s85, s85, s78\ns_lshl_b32 s82, s85, 18\ns_add_u32 s82, s82, s89")
    def setU():
        A(f"s_mul_i32 s86, s37, {56*16384}\ns_add_u32 s86, s86, {U}")
        A(f"v_lshlrev_b32 v19, 2, v1\ns_lshl_b32 s72, s37, 8\ns_add_u32 s72, s72, {UF}\ns_mov_b64 s[76:77], 0")
    def setW():
        srd(16, 20, 14680064)
        voff_T128(4096, 16)
        A("s_lshl_b32 s89, s43, 8")
    A("K1_pb_a:")
    A("v_lshlrev_b32 v18, 4, v1")
    srd(8, 4, 2097152)
    A("s_lshl_b32 s86, s37, 18")
    A("s_barrier")
    prod_pro(CA, itC, stC)
    prod_p0(CA, 16)
    A("s_mov_b32 s84, s67")
    prod_loop("K1_pbC", CA, itC, stC)
    setU()
    A("s_mov_b32 s84, s68")
    prod_loop("K1_pbU", CB, itU, stU, LDSC)
    prod_tail(CB, 16)
    A("s_waitcnt lgkmcnt(0)\ns_endpgm")
    A("K1_g1p1:")
    tc = [(28, 11, 75, 64*4096, None)] if TC else []
    A("s_and_b32 s71, s70, 1\ns_cmp_eq_u32 s71, 1\ns_cselect_b32 s28, s6, s4\ns_cselect_b32 s29, s7, s5\ns_mov_b32 s30, 2097152\ns_mov_b32 s31, 0x20000")
    A("s_lshr_b32 s75, s70, 1\ns_lshl_b32 s75, s75, 12")
    producer("K1_g1p1", C1, allit[24:] + tc, 16, st1, isws, True, None, E1)
    A("K1_pb_b:")
    A("v_lshlrev_b32 v18, 4, v1")
    A(f"s_lshl_b32 s89, s43, 19\ns_add_u32 s89, s89, {HT}")
    A(f"v_and_b32 v19, 31, v1\nv_lshlrev_b32 v19, 2, v19\ns_lshl_b32 s72, s43, 8\ns_add_u32 s72, s72, {HTF}\ns_mov_b64 s[76:77], 0")
    A("s_barrier")
    if TW1 or TW3:
        srd(16, 20, 14680064)
        A(f"s_lshl_b32 s64, s3, {13+TWL}\ns_cmp_eq_u32 s34, 1\ns_cselect_b32 s65, {TW1}, {TW3}\ns_cselect_b32 s62, {TW1O << 20}, {TW3O << 20}\ns_add_u32 s64, s64, s62")
        A(f"v_lshlrev_b32 v10, {7+TWL}, v1")
        A("s_cmp_eq_u32 s65, 0\ns_cbranch_scc1 K1_tw_done")
        A("K1_tw:\nbuffer_load_dword v21, v10, s[16:19], s64 offen")
        if TWS: A(f"s_sleep {TWS}")
        A(f"s_add_u32 s64, s64, {0x100000 << TWL}\ns_sub_u32 s65, s65, 1\ns_cmp_lg_u32 s65, 0\ns_cbranch_scc1 K1_tw")
        A("K1_tw_done:")
    prod_pro(CA, itH, stH, LDSC)
    prod_p0(CA, 16)
    A("s_mov_b32 s84, s67")
    prod_loop("K1_pbH", CA, itH, stH, LDSC)
    setW()
    A("s_mov_b32 s84, s68")
    prod_loop("K1_pbW", CB, itW, stW)
    prod_tail(CB, 16)
    A("s_waitcnt lgkmcnt(0)\nK1_end:\ns_endpgm\nK1_code_end:")

hdr = open("parallel_sum__ssm_conv_s5__mixer_token_mlp__prompt.s.ref").read().split("; Override launch geometry")[0]
A(hdr.rstrip())
A(f"; @launch kernel=k1_kernel grid=(256,1,1) block=(384,1,1) lds={K1_LDS}")
A('.amdgcn_target "amdgcn-amd-amdhsa--gfx950"')
gen_k1()
kernel_desc("k1_kernel", 256, 102)
open(OUT, "w").write("\n".join(L) + "\n")
print("wrote", OUT, len(L), "lines")
```

```python
import sys, os, struct

OUT = sys.argv[1] if len(sys.argv) > 1 else "parallel_sum__ssm_conv_s5__mixer_token_mlp__prompt.s"
def P(name, default):
    return int(os.environ.get(name, default))

STAMP = P("STAMP", 0)
K0_T = P("K0_T", 1)
K0_W1 = P("K0_W1", 0)
K1_PF = P("K1_PF", 1)
NB1 = P("NB1", 33)
RECV = P("RECV", 1)
LDSC = " sc1" if P("LDSC", 1) else ""
PF_C = P("PF_C", 0); PF_W2 = P("PF_W2", 0)
NPOLL = P("NPOLL", 2)
PROG = P("PROG", 1); T3 = P("T3", 0); T3_SKIP = P("T3_SKIP", 2); T1 = P("T1", 1); T1_SKIP = P("T1_SKIP", 2); TC = P("TC", 1); T2 = P("T2", 0)
OUTSC = ["", " sc1", " nt", " sc0 sc1"][P("OUTSC", 2)]
K0SC = ["", " sc1", " nt"][P("K0SC", 0)]
SPF = P("SPF", 0); SPF_ST = P("SPF_ST", 256)
SKEW = P("SKEW", 1)
MAP = P("MAP", 0); RG = P("RG", 8 if MAP else 4); PPAR = P("PPAR", 1)
NO_DMA = P("NO_DMA", 0); NO_MFMA = P("NO_MFMA", 0); NO_DS = P("NO_DS", 0)
BAR_AT = P("BAR_AT", 4)
NOBAR = P("NOBAR", 0)
DSW = P("DSW", 4)
BXQ = P("BXQ", 0); FLAG_AT = P("FLAG_AT", 4); BASE_MODE = P("BASE_MODE", 0)
N3A = P("N3A", 12)
TW1 = P("TW1", 0); TW3 = P("TW3", 0); TWS = P("TWS", 0); TWL = P("TWL", 0); TW1O = P("TW1O", 0); TW3O = P("TW3O", 14 - TW3)
NP1 = P("NP1", 14)
NUN = P("NUN", 1)
NGS = P("NGS", 2)
WBL2 = P("WBL2", 0)
USC = " sc1" if P("USC", 0) else ""
K0_TLB = P("K0_TLB", 0)

XN   = 0x0000000
H2   = 0x0400000
HT   = 0x0800000
U    = 0x1000000
COEF = 0x1800000
STAT = 0x1808000
AGG  = 0x1810000
FLAG = 0x1840000
UF   = FLAG
HTF  = FLAG + 0x1000
XF   = FLAG + 0x2000
LNF  = 0x1900000
XCH  = 0x2000000
STMP = 0x4000000
WS_SIZE = 0x4100000
SENT = 0xFFFFFFFF

KA = dict(x=0, lre=8, lim=16, bre=24, bim=32, cre=40, cim=48, ldt=56, dsk=64, w1=80, b1=88, w2=96, b2=104, out=112, dbg=120, ws=128)

L = []
INLOOP = [0]
def A(s):
    for line in s.split("\n"):
        if (NO_DMA == 1 or (NO_DMA == 2 and INLOOP[0])) and line.endswith(" lds"): line = "s_nop 0"
        if NO_MFMA and line.startswith("v_mfma"): line = "s_nop 0"
        if NO_DS and (line.startswith("ds_read_b128") or line.startswith("ds_read_b64_tr")): line = "s_nop 0"
        L.append(line)

def f32(x):
    return "0x%08x" % struct.unpack("<I", struct.pack("<f", x))[0]

def srd(s, ptr, size):
    A(f"s_mov_b32 s{s}, s{ptr}\ns_mov_b32 s{s+1}, s{ptr+1}\ns_mov_b32 s{s+2}, {size}\ns_mov_b32 s{s+3}, 0x20000")

def kernel_begin(name):
    A(f".text\n.globl {name}\n.p2align 8\n.type {name},@function\n{name}:")

def kernel_desc(name, vgpr, sgpr):
    acc = (vgpr + 3) // 4 * 4
    A('.section .rodata,"a"\n.p2align 6')
    A(f".amdhsa_kernel {name}")
    A(f"  .amdhsa_next_free_vgpr {vgpr}\n  .amdhsa_next_free_sgpr {sgpr}\n  .amdhsa_accum_offset {acc}")
    A("  .amdhsa_group_segment_fixed_size 0\n  .amdhsa_kernarg_size 136\n  .amdhsa_user_sgpr_count 2")
    A("  .amdhsa_user_sgpr_kernarg_segment_ptr 1\n  .amdhsa_system_sgpr_workgroup_id_x 1")
    A("  .amdhsa_float_denorm_mode_32 3\n  .amdhsa_float_denorm_mode_16_64 3")
    A(".end_amdhsa_kernel")

LOG2E = 1.4426950408889634

STAMP_N = [0]
def stamp(idx, wave=0, t=(6, 7, 5)):
    if not STAMP: return
    STAMP_N[0] += 1
    lab = f"stamp_skip_{STAMP_N[0]}"
    a, b, z = t
    A(f"s_cmp_lg_u32 s32, {wave}\ns_cbranch_scc1 {lab}")
    A(f"s_memrealtime s[96:97]\ns_waitcnt lgkmcnt(0)\nv_mov_b32 v{a}, s96\nv_mov_b32 v{b}, s97")
    A(f"s_lshl_b32 s98, s34, 7\ns_add_u32 s98, s98, s3\ns_lshl_b32 s98, s98, 8\ns_add_u32 s98, s98, {STMP + idx*8}\nv_mov_b32 v{z}, 0")
    A(f"buffer_store_dwordx2 v[{a}:{b}], v{z}, s[24:27], s98 offen")
    CY = {0: 12, 1: 13, 11: 24, 6: 25, 7: 26, 8: 27}
    if idx in CY:
        A(f"s_memtime s[96:97]\ns_waitcnt lgkmcnt(0)\ns_nop 1\nv_mov_b32 v{a}, s96\nv_mov_b32 v{b}, s97")
        A(f"buffer_store_dwordx2 v[{a}:{b}], v{z}, s[24:27], s98 offen offset:{(CY[idx]-idx)*8}")
    A(f"{lab}:")

PT3 = P("PT3", 0); PT1 = P("PT1", 0)
LNSC = ["", " sc1", " nt", " sc0 sc1"][P("LNSC", 1)]
PROT = P("PROT", 0); TLBW = P("TLBW", 1); CPF = P("CPF", 1)
XSC = " sc1" if P("XSC", 0) else ""

NT_ = lambda n, d: " nt" if P(n, d) else ""
NTW1, NTW2, NTB, NTC, NTX, NTT, NTX2 = NT_("NTW1", 0), NT_("NTW2", 0), NT_("NTB", 0), NT_("NTC", 0), NT_("NTX", 0), NT_("NTT", 0), NT_("NTX2", 0)
CPOL = [""]
PPOLS = [" sc1", " sc0 sc1", " sc1 nt", " sc0 sc1 nt"]
PP_F, PP_L, PP_A = PPOLS[P("PPF", 0)], PPOLS[P("PPL", 0)], PPOLS[P("PPA", 0)]
PSLF = P("PSLF", 2)
AH1 = P("AH1", 0); AH2 = P("AH2", 0); AH1_J = P("AH1_J", 1); AH2_L = P("AH2_L", 12); AH_POL = [" sc1", ""][P("AHP", 0)]; AH_D2 = 19; AH_WS = P("AH_WS", 1)
NTF1 = P("NTF1", 0); NTF2 = P("NTF2", 0); NTF_POL = [" sc1 nt", " nt", " sc0 sc1 nt"][P("NTFP", 0)]
def round_bf16(dst, src):
    A(f"v_cvt_pk_bf16_f32 {dst}, 0, {src}")

def wave_sum2(vs, ss):
    for op in ("quad_perm:[1,0,3,2] row_mask:0xf", "quad_perm:[2,3,0,1] row_mask:0xf", "row_half_mirror row_mask:0xf", "row_mirror row_mask:0xf",
               "row_bcast:15 row_mask:0xa", "row_bcast:31 row_mask:0xc"):
        A(f"s_nop {max(0, 2-len(vs))}")
        for v in vs: A(f"v_add_f32_dpp v{v}, v{v}, v{v} {op} bank_mask:0xf")
    A("s_nop 1")
    for v, s_ in zip(vs, ss): A(f"v_readlane_b32 s{s_}, v{v}, 63")

def layernorm2(X, PK, T, unpack):
    R = range(len(X))
    pk = lambda a: f"v[{a}:{a+1}]"
    for r in R: A(f"v_pk_add_f32 {pk(T[r])}, {pk(X[r])}, {pk(X[r]+2)}\nv_pk_add_f32 {pk(T[r]+2)}, {pk(X[r]+4)}, {pk(X[r]+6)}")
    for r in R: A(f"v_pk_add_f32 {pk(T[r]+4)}, {pk(X[r]+8)}, {pk(X[r]+10)}\nv_pk_add_f32 {pk(T[r]+6)}, {pk(X[r]+12)}, {pk(X[r]+14)}")
    for r in R: A(f"v_pk_add_f32 {pk(T[r])}, {pk(T[r])}, {pk(T[r]+2)}\nv_pk_add_f32 {pk(T[r]+4)}, {pk(T[r]+4)}, {pk(T[r]+6)}")
    for r in R: A(f"v_pk_add_f32 {pk(T[r])}, {pk(T[r])}, {pk(T[r]+4)}")
    for r in R: A(f"v_add_f32 v{T[r]}, v{T[r]}, v{T[r]+1}")
    wave_sum2([T[r] for r in R], [64+r for r in R])
    A("s_nop 0")
    for r in R: A(f"v_mov_b32 v{T[r]+6}, {f32(-1.0/1024)}\nv_mul_f32 v{T[r]+6}, s{64+r}, v{T[r]+6}")
    for i in range(0, 16, 4):
        for r in R:
            for h in range(2):
                A(f"v_pk_add_f32 {pk(T[r]+4*0+0 if False else PK[r]+2*h)}, {pk(X[r]+i+2*h)}, {pk(T[r]+6)} op_sel_hi:[1,0]")
        for r in R:
            for h in range(2):
                if i == 0: A(f"v_pk_mul_f32 {pk(T[r]+2*h)}, {pk(PK[r]+2*h)}, {pk(PK[r]+2*h)}")
                else: A(f"v_pk_fma_f32 {pk(T[r]+2*h)}, {pk(PK[r]+2*h)}, {pk(PK[r]+2*h)}, {pk(T[r]+2*h)}")
    for r in R: A(f"v_pk_add_f32 {pk(T[r])}, {pk(T[r])}, {pk(T[r]+2)}")
    for r in R: A(f"v_add_f32 v{T[r]}, v{T[r]}, v{T[r]+1}")
    wave_sum2([T[r] for r in R], [64+r for r in R])
    for r in R: round_bf16(f"v{T[r]+6}", f"v{T[r]+6}")
    for r in R: A(f"v_mov_b32 v{T[r]}, {f32(1.0/1024)}\nv_mul_f32 v{T[r]}, s{64+r}, v{T[r]}")
    for r in R: round_bf16(f"v{T[r]}", f"v{T[r]}")
    for r in R: A(f"v_add_f32 v{T[r]}, {f32(1e-5)}, v{T[r]}")
    for r in R: round_bf16(f"v{T[r]}", f"v{T[r]}")
    for r in R: A(f"v_sqrt_f32 v{T[r]}, v{T[r]}")
    for i in range(0, 16, 2):
        for r in R: A(f"v_pk_add_f32 {pk(X[r]+i)}, {pk(X[r]+i)}, {pk(T[r]+6)} op_sel_hi:[1,0]")
    for r in R: round_bf16(f"v{T[r]}", f"v{T[r]}")
    for r in R: A(f"v_rcp_f32 v{T[r]+2}, v{T[r]}")
    for i in range(16):
        for r in R: round_bf16(f"v{X[r]+i}", f"v{X[r]+i}")
    for r in R: A(f"v_fma_f32 v{T[r]+3}, -v{T[r]}, v{T[r]+2}, 1.0")
    for r in R: A(f"v_fma_f32 v{T[r]+2}, v{T[r]+2}, v{T[r]+3}, v{T[r]+2}")
    for i in range(0, 16, 2):
        for r in R: A(f"v_pk_mul_f32 {pk(X[r]+i)}, {pk(X[r]+i)}, {pk(T[r]+2)} op_sel_hi:[1,0]")
    for i in range(0, 16, 2):
        for r in R: A(f"v_cvt_pk_bf16_f32 v{PK[r]+i//2}, v{X[r]+i}, v{X[r]+i+1}")
    if unpack:
        for i in range(0, 16, 2):
            for r in R: A(f"v_lshlrev_b32 v{X[r]+i}, 16, v{PK[r]+i//2}\nv_and_b32 v{X[r]+i+1}, 0xffff0000, v{PK[r]+i//2}")

LX = [128, 144]; LRAW = [160, 168]; LPK1 = [176, 184]; LPK2 = [192, 200]; LT = [208, 216]; LFV, LFA, LV16 = 224, 225, 226
LRAW2 = 228
LNG1 = P("LNG1", 0)
NR = 4 if LNG1 else 2
def ln_issue():
    srd(68, 56, 2048*1024*2)
    if LNG1: A("s_lshl_b32 s66, s3, 4\ns_lshl_b32 s67, s32, 2")
    elif P("LNMAP", 0): A("s_and_b32 s66, s2, 7\ns_lshl_b32 s66, s66, 5\ns_lshr_b32 s67, s2, 3\ns_add_u32 s66, s66, s67\ns_lshl_b32 s66, s66, 3\ns_lshl_b32 s67, s32, 1")
    else: A("s_lshl_b32 s66, s2, 3\ns_lshl_b32 s67, s32, 1")
    A("s_add_u32 s66, s66, s67\ns_lshl_b32 s67, s66, 11")
    A(f"v_lshlrev_b32 v{LV16}, 4, v1")
    if LNG1: A("s_cmp_eq_u32 s34, 0\ns_cbranch_scc1 K1_nox")
    for r in range(NR):
        if r == 2: A("s_add_u32 s64, s67, 4096")
        for h in range(2):
            d = (LRAW[0] if r < 2 else LRAW2) + 8*(r & 1) + 4*h
            A(f"buffer_load_dwordx4 v[{d}:{d+3}], v{LV16}, s[68:71], s{67 if r < 2 else 64} offen offset:{2048*(r & 1) + 1024*h}{NTX}")
    if LNG1: A("K1_nox:")
    A("s_barrier")
    A("s_bfe_u32 s64, s66, 0x30002\ns_lshl_b32 s64, s64, 4\ns_bfe_u32 s65, s66, 0x20005\ns_lshl_b32 s65, s65, 2\ns_add_u32 s64, s64, s65")
    A("s_and_b32 s65, s66, 0xffffff83\ns_add_u32 s64, s64, s65\ns_lshl_b32 s73, s64, 11")
    if XN: A(f"s_add_u32 s73, s73, {XN}")
    A(f"s_add_u32 s72, s67, {H2}")
    if TLBW:
        A(f"v_mov_b32 v{LFA}, 0\ns_mov_b64 exec, 1\nbuffer_load_dword v{LFV}, v{LFA}, s[24:27], s73 offen\nbuffer_load_dword v{LFV}, v{LFA}, s[24:27], s72 offen\ns_mov_b64 exec, -1")
def ln_compute(nafter):
    if LNG1: A("s_cmp_eq_u32 s34, 0\ns_cbranch_scc1 K1_noln\ns_mov_b32 s74, 0")
    A(f"s_waitcnt vmcnt({nafter + 2*TLBW + (4 if LNG1 else 0)})")
    stamp(16, t=(2, 3, 4))
    A("K1_lnloop:")
    for r in range(2):
        for i in range(8):
            A(f"v_lshlrev_b32 v{LX[r]+2*i}, 16, v{LRAW[r]+i}\nv_and_b32 v{LX[r]+2*i+1}, 0xffff0000, v{LRAW[r]+i}")
    layernorm2(LX, LPK1, LT, True)
    for r in range(2):
        for h in range(2):
            A(f"buffer_store_dwordx4 v[{LPK1[r]+4*h}:{LPK1[r]+4*h+3}], v{LV16}, s[24:27], s73 offen offset:{2048*r + 1024*h}{LNSC}")
    layernorm2(LX, LPK2, LT, False)
    for r in range(2):
        for h in range(2):
            A(f"buffer_store_dwordx4 v[{LPK2[r]+4*h}:{LPK2[r]+4*h+3}], v{LV16}, s[24:27], s72 offen offset:{2048*r + 1024*h}{LNSC}")
    if LNG1:
        A("s_cmp_eq_u32 s74, 1\ns_cbranch_scc1 K1_lndone\ns_mov_b32 s74, 1\ns_add_u32 s72, s72, 4096\ns_add_u32 s73, s73, 4096\ns_waitcnt vmcnt(8)")
        for i in range(16): A(f"v_mov_b32 v{LRAW[0]+i}, v{LRAW2+i}")
        A("s_branch K1_lnloop\nK1_lndone:")
    stamp(17, t=(2, 3, 4))
    if LNG1: A("K1_noln:")
    A("s_waitcnt vmcnt(0)")
    A("s_barrier")
    stamp(18, t=(2, 3, 4))

def coef(i0, o, t):
    a, b, c = i0, i0+1, i0+2
    A(f"v_lshlrev_b32 v{a}, 16, v{a}\nv_lshlrev_b32 v{b}, 16, v{b}\nv_lshlrev_b32 v{c}, 16, v{c}")
    A(f"v_mul_f32 v{c}, {f32(LOG2E)}, v{c}\nv_exp_f32 v{c}, v{c}\ns_nop 0")
    round_bf16(f"v{c}", f"v{c}")
    A(f"v_mul_f32 v{t}, v{c}, v{a}\nv_mul_f32 v{t+1}, v{c}, v{b}")
    A(f"v_mul_f32 v{t+2}, {f32(LOG2E)}, v{t}\nv_exp_f32 v{t+2}, v{t+2}")
    A(f"v_mul_f32 v{t+3}, {f32(0.15915494309189535)}, v{t+1}\nv_fract_f32 v{t+3}, v{t+3}")
    A(f"v_cos_f32 v{t+4}, v{t+3}\nv_sin_f32 v{t+5}, v{t+3}\ns_nop 0")
    A(f"v_mul_f32 v{o}, v{t+2}, v{t+4}\nv_mul_f32 v{o+1}, v{t+2}, v{t+5}")
    A(f"v_add_f32 v{t+6}, -1.0, v{o}")
    A(f"v_mul_f32 v{t+7}, v{a}, v{a}\nv_fmac_f32 v{t+7}, v{b}, v{b}\nv_rcp_f32 v{t+8}, v{t+7}\ns_nop 0")
    A(f"v_fma_f32 v{t+9}, -v{t+7}, v{t+8}, 1.0\nv_fma_f32 v{t+8}, v{t+8}, v{t+9}, v{t+8}\nv_add_f32 v{t+8}, v{t+8}, v{t+8}")
    A(f"v_mul_f32 v{o+2}, v{t+6}, v{a}\nv_fmac_f32 v{o+2}, v{o+1}, v{b}\nv_mul_f32 v{o+2}, v{o+2}, v{t+8}")
    A(f"v_mul_f32 v{o+3}, v{o+1}, v{a}\nv_fma_f32 v{o+3}, -v{t+6}, v{b}, v{o+3}\nv_mul_f32 v{o+3}, v{o+3}, v{t+8}")
    A(f"v_mov_b32 v{o+4}, v{o}\nv_mov_b32 v{o+5}, v{o+1}")
    def csq(r, i):
        A(f"v_mul_f32 v{t+9}, v{r}, v{r}\nv_fma_f32 v{t+9}, -v{i}, v{i}, v{t+9}\nv_mul_f32 v{t+10}, v{r}, v{i}\nv_add_f32 v{i}, v{t+10}, v{t+10}\nv_mov_b32 v{r}, v{t+9}")
    for _ in range(5): csq(o+4, o+5)
    A(f"v_mov_b32 v{o+6}, v{o+4}\nv_mov_b32 v{o+7}, v{o+5}")
    for _ in range(2): csq(o+6, o+7)

FSP = P("FSP", 16); NREP = P("NREP", 8); PSL = P("PSL", 2)
def snap_issue():
    A(f"v_mul_u32_u24 v45, {FSP}, v1\ns_and_b32 s62, s2, {NREP-1}\ns_mul_i32 s62, s62, {256*FSP}\ns_add_u32 s62, s62, {LNF}")
    flag_loads(40)
    A(f"v_and_b32 v46, {NREP-1}, v1\nv_mul_u32_u24 v46, {256*FSP}, v46\ns_mul_i32 s63, s2, {FSP}\ns_add_u32 s63, s63, {LNF}")
    A("buffer_load_dword v44, v46, s[24:27], s63 offen" + PP_L)
    return 5
def flag_loads(d):
    for i in range(4):
        A(f"s_add_u32 s64, s62, {i*64*FSP}\nbuffer_load_dword v{d+i}, v45, s[24:27], s64 offen{PP_L}")
def ln_publish(x):
    A(f"v_xor_b32 v47, {x}, v44\ns_mov_b64 exec, {(1 << NREP)-1}\nbuffer_store_dword v47, v46, s[24:27], s63 offen sc1\ns_mov_b64 exec, -1")
def ln_poll(tag):
    A("s_mov_b32 s73, 0x40000")
    A(f"{tag}_lnpoll:")
    flag_loads(48)
    A("s_waitcnt vmcnt(0)")
    for i in range(4): A(f"v_xor_b32 v{48+i}, v{48+i}, v{40+i}")
    A("v_min_u32 v48, v48, v49\nv_min3_u32 v48, v48, v50, v51")
    A(f"v_cmp_eq_u32 vcc, 0, v48\ns_cmp_eq_u64 vcc, 0\ns_cbranch_scc1 {tag}_lnok")
    A(f"s_sleep {PSL}\ns_sub_u32 s73, s73, 1\ns_cmp_lg_u32 s73, 0\ns_cbranch_scc1 {tag}_lnpoll")
    A(f"{tag}_lnok:")
    ln_publish(2)
FR = 32
ACC = 128

class Core:
    def __init__(self, tA, tB, MB, NS, areg, breg):
        self.tA, self.tB, self.MB, self.NS = tA, tB, MB, NS
        self.areg, self.breg = areg, breg
        self.AB = 64*448 if tA == 'T224' else MB*32*128
        self.SS = self.AB + 16384
        self.FS = (MB + 4)*4
        self.na = {'N': 2, 'F': 1, 'T224': 4}[tA]
        self.nb = {'N': 2, 'H': 2, 'T128': 4}[tB]

    def addr_setup(self, sq=None):
        MB, AR, BR = self.MB, self.areg, self.breg
        A("v_and_b32 v2, 15, v1\nv_lshrrev_b32 v3, 4, v1")
        if self.tA == 'N' or self.tB == 'N':
            A("v_lshrrev_b32 v4, 1, v2\nv_xor_b32 v4, v4, v3\nv_lshlrev_b32 v4, 4, v4\nv_lshlrev_b32 v5, 7, v2\nv_add_u32 v4, v4, v5")
        if self.tA == 'N':
            A(f"s_mul_i32 s90, s60, {MB*16*128}\nv_add_u32 v{AR}, s90, v4\nv_xor_b32 v{AR+1}, 64, v{AR}")
        if self.tB == 'N':
            A(f"s_lshl_b32 s90, s61, 13\ns_add_u32 s90, s90, {self.AB}\nv_add_u32 v{BR}, s90, v4\nv_xor_b32 v{BR+1}, 64, v{BR}")
        if self.tA == 'F':
            A(f"s_mul_i32 s90, s60, {MB*2048}\nv_lshlrev_b32 v4, 4, v1\nv_add_u32 v{AR}, s90, v4")
        A("v_lshrrev_b32 v5, 2, v1\nv_and_b32 v6, 3, v1\nv_lshlrev_b32 v6, 3, v6")
        if self.tA == 'T224':
            A("v_mul_u32_u24 v7, 448, v5\nv_add_u32 v7, v7, v6")
            A("v_and_b32 v4, 1, v3\nv_lshlrev_b32 v4, 5, v4")
            A("s_lshl_b32 s90, s60, 8\nv_add_u32 v2, s90, v7")
            A(f"v_add_u32 v{AR}, v2, v4")
            A(f"v_sub_u32 v{AR+1}, v2, v4\nv_add_u32 v{AR+1}, 32, v{AR+1}")
            A(f"v_add_u32 v{AR+2}, v7, v4\nv_add_u32 v{AR+2}, 192, v{AR+2}")
            A(f"v_sub_u32 v{AR+3}, v7, v4\nv_add_u32 v{AR+3}, 224, v{AR+3}")
        if self.tB == 'T128':
            A("v_and_b32 v4, 7, v5\ns_lshl_b32 s90, s61, 2")
            if sq is not None: A(f"s_add_u32 s90, s90, s{sq}")
            A("v_xor_b32 v4, s90, v4\nv_lshlrev_b32 v4, 5, v4\nv_lshlrev_b32 v7, 8, v5\nv_add_u32 v7, v7, v6")
            A(f"v_add_u32 v7, {self.AB}, v7")
            for nb in range(4):
                A(f"v_xor_b32 v2, {32*nb}, v4\nv_add_u32 v{BR+nb}, v7, v2")
        if self.tB == 'H':
            A("v_lshrrev_b32 v4, 1, v3\nv_lshlrev_b32 v4, 12, v4")
            A("v_bfe_u32 v7, v1, 1, 1\nv_mul_u32_u24 v7, 1088, v7\nv_add_u32 v4, v4, v7")
            A("v_and_b32 v7, 1, v3\nv_lshlrev_b32 v7, 7, v7\nv_add_u32 v4, v4, v7")
            A("v_and_b32 v7, 3, v5\nv_lshlrev_b32 v7, 4, v7\nv_add_u32 v4, v4, v7")
            A("v_and_b32 v7, 1, v1\nv_lshlrev_b32 v7, 3, v7\nv_add_u32 v4, v4, v7")
            A(f"s_lshl_b32 s90, s61, 9\ns_add_u32 s90, s90, {self.AB}\nv_add_u32 v{BR}, s90, v4\nv_xor_b32 v{BR+1}, 64, v{BR}")

    def reads(self, kk):
        fs = FR + kk*self.FS
        MB, AR, BR = self.MB, self.areg, self.breg
        ra, rb = [], []
        for mb in range(MB):
            d = fs + 4*mb
            if self.tA == 'N':
                ra.append(f"ds_read_b128 v[{d}:{d+3}], v{AR+kk} offset:{2048*mb}")
            elif self.tA == 'F':
                ra.append(f"ds_read_b128 v[{d}:{d+3}], v{AR} offset:{2048*mb + 1024*kk}")
            else:
                for rd in range(2):
                    if mb < 6: a, o = AR + (mb & 1), 64*(mb >> 1)
                    else: a, o = AR + mb - 4, 0
                    ra.append(f"ds_read_b64_tr_b16 v[{d+2*rd}:{d+2*rd+1}], v{a} offset:{o + rd*7168 + kk*14336}")
        for nb in range(4):
            d = fs + 4*MB + 4*nb
            if self.tB == 'N':
                rb.append(f"ds_read_b128 v[{d}:{d+3}], v{BR+kk} offset:{2048*nb}")
            elif self.tB == 'T128':
                for rd in range(2):
                    rb.append(f"ds_read_b64_tr_b16 v[{d+2*rd}:{d+2*rd+1}], v{BR+nb} offset:{rd*4096 + kk*8192}")
            else:
                for rd in range(2):
                    rb.append(f"ds_read_b64_tr_b16 v[{d+2*rd}:{d+2*rd+1}], v{BR+rd} offset:{kk*8192 + (nb&1)*2048 + (nb>>1)*256}")
        pa = len(ra)//MB
        return ra[:pa] + rb + ra[pa:]

    def mfmas(self, kk, csrc=None):
        fs = FR + kk*self.FS
        MB = self.MB
        r = []
        for mb in range(MB):
            if self.tA == 'T224' and mb >= 6:
                lst = [(nb, 24 + (mb-6)*2 + nb) for nb in ((0, 1) if mb == 6 else (1, 0))]
            else:
                lst = [(nb, mb*4+nb) for nb in (range(4) if mb % 2 == 0 else range(3, -1, -1))]
            for nb, blk in lst:
                d = ACC + blk*4
                c = f"v[{d}:{d+3}]" if csrc is None else csrc(mb, nb)
                r.append(f"v_mfma_f32_16x16x32_bf16 v[{d}:{d+3}], v[{fs+4*mb}:{fs+4*mb+3}], v[{fs+4*MB+4*nb}:{fs+4*MB+4*nb+3}], {c}")
        return r

    def substep(self, kk, rd, bar, upd, updv=True, fill=None, csrc=None):
        mf = self.mfmas(kk, csrc)
        A("s_waitcnt lgkmcnt(0)")
        start = BAR_AT if bar else 1
        nslots = len(mf) - start - 5
        sched = {}
        for i, x in enumerate(rd):
            sl = start + (i*nslots)//max(len(rd), 1)
            sched.setdefault(sl, []).append(x)
        regs = [self.areg+i for i in range(self.na)] + [self.breg+i for i in range(self.nb)]
        half = (len(regs)+1)//2
        post = {}
        if upd:
            post[0] = [f"s_add_u32 s93, s93, 1\ns_cmp_eq_u32 s93, {self.NS}\ns_cselect_b32 s94, {(-(self.NS-1)*self.SS) & 0xffffffff}, s95\ns_cselect_b32 s93, 0, s93"]
            if updv:
                post[1] = [f"v_add_u32 v{r}, s94, v{r}" for r in regs[:half]]
                post[2] = [f"v_add_u32 v{r}, s94, v{r}" for r in regs[half:]]
        fl = {}
        if fill:
            n = len(mf)
            base = [4*len(post.get(m, [])) + DSW*len(sched.get(m+1, [])) for m in range(n)]
            tot = sum(c for _, c in fill)
            T = 0.0
            while sum(max(0.0, T - x) for x in base) < tot: T += 0.25
            cum = 0.0; done = 0.0; i = 0
            for m in range(n):
                cum += max(0.0, T - base[m])
                while i < len(fill) and (done + fill[i][1]/2 <= cum or m == n-1):
                    fl.setdefault(m, []).append(fill[i][0]); done += fill[i][1]; i += 1
        for m, x in enumerate(mf):
            if m == start and bar and not (NOBAR and bar != 'x'): A("s_barrier")
            for y in sched.get(m, []): A(y)
            A(x)
            for y in post.get(m, []): A(y)
            for y in fl.get(m, []): A(y)

    def start(self):
        A(f"s_mov_b32 s93, 0\ns_mov_b32 s95, {self.SS}")
        A("s_barrier")
        for x in self.reads(0): A(x)
    def body(self, tag, hook=None):
        A(f"{tag}_loop:")
        self.substep(0, self.reads(1), False, False, fill=[(hook, 4)] if hook else None)
        self.substep(1, self.reads(0), True, True)
        A(f"s_sub_u32 s92, s92, 1\ns_cmp_lg_u32 s92, 0\ns_cbranch_scc1 {tag}_loop")
    def tail(self, xbar=False):
        self.substep(0, self.reads(1), False, False)
        self.substep(1, [], 'x' if xbar else False, False)
    def loop(self, tag, nsteps, xbar=False, hook=None):
        self.start()
        stamp(11, t=(2, 3, 4))
        A(f"s_mov_b32 s92, {nsteps-1}")
        self.body(tag, hook)
        self.tail(xbar)

def ahead_pair():
    return (f"buffer_load_dword v19, v18, s[16:19], s46 offen{NTF_POL}\nbuffer_load_dword v{AH_D2}, v18, s[16:19], s46 offen{AH_POL}")
def ahead_hook(tag, stride):
    return (f"s_sub_u32 s44, s44, 1\ns_cmp_lg_u32 s44, 0\ns_cbranch_scc1 {tag}_ah\n" + ahead_pair() +
            f"\ns_add_u32 s46, s46, {stride}\ns_cmp_lt_u32 s46, s47\ns_cselect_b32 s44, 8, 0x7fff\n{tag}_ah:")
def zero_regs(base, n):
    for i in range(n): A(f"v_mov_b32 v{base+i}, 0")

def voff_N(pitch, dst):
    A("v_lshrrev_b32 v2, 3, v1\nv_and_b32 v3, 7, v1\nv_lshrrev_b32 v4, 1, v2\nv_xor_b32 v3, v3, v4")
    A(f"s_mov_b32 s90, {pitch}\nv_mul_lo_u32 v2, v2, s90\nv_lshlrev_b32 v3, 4, v3")
    A(f"v_add_u32 v{dst}, v2, v3\nv_xor_b32 v3, 64, v3\nv_add_u32 v{dst+1}, v2, v3")

def voff_T128(pitch, dst):
    A("v_lshrrev_b32 v2, 4, v1\nv_and_b32 v3, 15, v1\nv_lshlrev_b32 v4, 1, v2\nv_xor_b32 v3, v3, v4")
    A(f"s_mov_b32 s90, {pitch}\nv_mul_lo_u32 v2, v2, s90\nv_lshlrev_b32 v3, 4, v3")
    A(f"v_add_u32 v{dst}, v2, v3\nv_xor_b32 v3, 128, v3\nv_add_u32 v{dst+1}, v2, v3")

def voff_T224(pitch, dst):
    A(f"s_mov_b32 s90, {pitch}")
    for j in range(7):
        A(f"v_add_u32 v2, {64*j}, v1\nv_mul_u32_u24 v3, 2341, v2\nv_lshrrev_b32 v3, 16, v3")
        A("v_mul_u32_u24 v4, 28, v3\nv_sub_u32 v2, v2, v4")
        A("v_bfe_u32 v4, v3, 2, 1\nv_lshlrev_b32 v4, 1, v4\nv_xor_b32 v2, v2, v4\nv_lshlrev_b32 v2, 4, v2")
        A(f"v_mul_lo_u32 v3, v3, s90\nv_add_u32 v{dst+j}, v3, v2")

PRE = [None]; PRE_N = [0]
def issue(core, items, setup_stage, pol="", first=None):
    NS, SS = core.NS, core.SS
    setup_stage()
    if PRE[0] and first is not False and not (first is None and NTF1 == 2 and PRE[0][0][2] == 81):
        PRE_N[0] += 1
        if first is None: A(f"s_cmp_lg_u32 s91, 0\ns_cbranch_scc1 K1_pre{PRE_N[0]}")
        for (sr, v, sb, ro) in PRE[0]:
            A(f"s_add_u32 s83, s{sb}, {ro}\nbuffer_load_dword v21, v{v}, s[{sr}:{sr+3}], s83 offen{NTF_POL}")
        if first is None: A(f"K1_pre{PRE_N[0]}:")
    prev = None
    for (sr, v, sb, ro, lo) in items:
        if lo == 'S':
            A(f"s_buffer_load_dword s100, s[{sr}:{sr+3}], s{sb} offset:{v}")
            if ro: A(f"s_add_u32 s{sb}, s{sb}, {ro}")
            continue
        if lo is None:
            A(f"buffer_load_dword v21, v{v}, s[{sr}:{sr+3}], s{sb} offen{NTT}\ns_add_u32 s{sb}, s{sb}, {ro}")
            continue
        if prev is None: A(f"s_add_u32 m0, s80, {lo}")
        else: A(f"s_add_u32 m0, m0, {lo-prev}")
        prev = lo
        A(f"s_add_u32 s83, s{sb}, {ro}")
        A(f"buffer_load_dwordx4 v{v}, s[{sr}:{sr+3}], s83 offen{pol if pol else (XSC if sr == 24 else CPOL[0])} lds")
    A(f"s_add_u32 s80, s80, {SS}\ns_cmp_eq_u32 s80, {NS*SS}\ns_cselect_b32 s80, 0, s80")

def with_spf(items, n, sr=92, sb=99):
    if not n: return items
    r = []; k = 0
    for i, x in enumerate(items):
        r.append(x)
        while k < n and k*len(items) < (i+1)*n:
            r.append((sr, k*128, sb, n*128 if k == n-1 else 0, 'S')); k += 1
    return r
def vcount(items): return len([x for x in items if x[4] != 'S'])
def prod_pro(core, items, setup, pol="", extra=0):
    NS = core.NS; cnt = vcount(items)
    A("s_mov_b32 s80, 0\ns_mov_b32 s87, 0")
    for i in range(NS):
        if (i+1)*cnt + extra > 63: A(f"s_waitcnt vmcnt({63-cnt})")
        issue(core, items, setup, pol)
def prod_p0(core, cnt):
    A(f"s_waitcnt vmcnt({(core.NS-1)*cnt})\ns_barrier")
def prod_loop(tag, core, items, setup, pol=""):
    NS = core.NS; cnt = vcount(items)
    A(f"{tag}_loop:")
    A(f"s_waitcnt vmcnt({(NS-2-P('LESSINF',0))*cnt})" + ("" if NOBAR else "\ns_barrier"))
    INLOOP[0] = 1
    issue(core, items, setup, pol)
    INLOOP[0] = 0
    A(f"s_sub_u32 s84, s84, 1\ns_cmp_lg_u32 s84, 0\ns_cbranch_scc1 {tag}_loop")
def prod_tail(core, cnt):
    for r in range(core.NS-2, -1, -1):
        A(f"s_waitcnt vmcnt({r*cnt})" + ("" if NOBAR else "\ns_barrier"))

def producer(tag, core, items, nsteps, setup, late, poll, pre=None, E=(1, 2), pre0=None):
    NS = core.NS
    early = [x for x in items if not late(x) and x[4] is not None and x[4] != 'S']
    lat = [x for x in items if late(x) or (x[4] is None and PROT)]
    full = [x for x in items if (x[4] is not None or PROT) and x[4] != 'S']
    out = [0]
    def stage(its, st):
        if not its: return 0
        n = vcount(its)
        first = bool(PRE[0]) and st % RG == 0 and any(x[0] == PRE[0][0][0] for x in its)
        if first: n += len(PRE[0])
        if out[0] + n > 63:
            A(f"s_waitcnt vmcnt({63-n})"); out[0] = 63 - n
        A(f"s_mov_b32 s80, {st*core.SS}\ns_mov_b32 s87, {st}")
        issue(core, its, setup, first=first)
        out[0] += n
        return n
    stamp(14, wave=4, t=(2, 3, 4))
    out[0] += STAMP + CPF
    if poll: out[0] += snap_issue()
    A("s_barrier")
    ne = 0
    for st in range(E[0]): ne += stage(early, st)
    if pre0: out[0] += pre0()
    A("s_barrier")
    if poll:
        A(f"s_waitcnt vmcnt({ne})")
        ln_publish(1); out[0] += 1
    for st in range(E[0], E[1]): stage(early, st)
    if poll:
        ln_poll(tag); out[0] = 1
    if pre: pre(); out[0] = 63
    stamp(19, wave=5, t=(2, 3, 4))
    out[0] += STAMP
    A("s_barrier")
    n = []
    for st in range(NS):
        n.append(stage(lat if st < E[1] else full, st))
    if not lat:
        n = [vcount(early)]*NS
    A(f"s_mov_b32 s80, 0\ns_mov_b32 s87, {NS}")
    if STAMP: A(f"s_waitcnt vmcnt({n[1]+n[2]})")
    stamp(15, wave=4, t=(2, 3, 4))
    assert NS == 3
    A(f"s_waitcnt vmcnt({n[1]+n[2]})\ns_barrier")
    A(f"s_waitcnt vmcnt({n[2]})\ns_barrier")
    issue(core, items, setup, first=False)
    A(f"s_mov_b32 s84, {nsteps-NS-1}")
    prod_loop(tag, core, items, setup)
    prod_tail(core, vcount(items))

def rot_index(n4=None):
    if SKEW:
        if n4 is None:
            if PRE[0]: A(f"s_and_b32 s91, s87, {RG-1}")
            A(f"s_add_u32 s85, s87, s88\ns_and_b32 s85, s85, {RG-1}\ns_andn2_b32 s83, s87, {RG-1}\ns_or_b32 s85, s85, s83")
        else:
            A(f"s_cmp_lt_u32 s87, s69\ns_cselect_b32 s83, 3, 0\ns_cmp_lt_u32 s87, s{n4}\ns_cselect_b32 s83, {RG-1}, s83")
            if PRE[0]: A("s_and_b32 s91, s87, s83")
            A("s_add_u32 s85, s87, s88\ns_and_b32 s85, s85, s83\ns_andn2_b32 s83, s87, s83\ns_or_b32 s85, s85, s83")
    else:
        A("s_mov_b32 s85, s87")
    A("s_add_u32 s87, s87, 1")

def cfma(dr, di, ar, ai, xr, xi, yr, yi):
    A(f"v_fma_f32 v{dr}, v{ar}, v{xr}, v{yr}\nv_fma_f32 v{di}, v{ar}, v{xi}, v{yi}")
    A(f"v_fma_f32 v{dr}, -v{ai}, v{xi}, v{dr}\nv_fma_f32 v{di}, v{ai}, v{xr}, v{di}")
def cmul(dr, di, ar, ai, xr, xi):
    A(f"v_mul_f32 v{dr}, v{ar}, v{xr}\nv_mul_f32 v{di}, v{ar}, v{xi}")
    A(f"v_fma_f32 v{dr}, -v{ai}, v{xi}, v{dr}\nv_fma_f32 v{di}, v{ai}, v{xr}, v{di}")

def flag_poll(tag, voff, soff):
    A("s_mov_b32 s73, 0x40000")
    A(f"{tag}_poll:")
    A(f"buffer_load_dword v20, v{voff}, s[24:27], s{soff} offen sc1")
    A("s_waitcnt vmcnt(0)")
    A(f"v_cmp_eq_u32 vcc, 1, v20\ns_cmp_eq_u64 vcc, -1\ns_cbranch_scc1 {tag}_ok")
    A(f"s_sleep 2\ns_sub_u32 s73, s73, 1\ns_cmp_lg_u32 s73, 0\ns_cbranch_scc1 {tag}_poll")
    A(f"{tag}_ok:")
C1 = Core('N', 'N', 8, 3, 8, 12)
C3 = Core('T224', 'T128', 8, 3, 8, 12)
CA = Core('N', 'H', 4, 4, 8, 16)
CB = Core('F', 'T128', 4, 4, 10, 12)
K1_LDS = max(C1.SS*C1.NS, C3.SS*C3.NS, CB.SS*CB.NS + 4*16*272)
NB3 = 56 - NB1
E3 = (P('E3A', 1), P('E3B', 2)); E1 = (P('E1A', 1), P('E1B', 2))
N1A = 32 - N3A
assert N3A % RG == 0 and NUN + 1 < N3A and N3A >= 5 and N1A >= 5 and NB1 >= 6 and NB3 >= 6
XR, DR, DU = 96, 28, 16
PD = 192
TP = 272
BREG = 131072
def xn_reg(k): return ACC + 16*(k % 4) + 4*(k // 4)

def rnd(dst, src): return f"v_cvt_pk_bf16_f32 v{dst}, 0, v{src}"

BASE3 = P("BASE3", 0)
def base_setup(va=5, vb=15, sb=80):
    srd(8, 56, 2048*1024*2); srd(12, 58, 2048)
    t = """s_lshl_b32 s82, s43, 7\ns_lshl_b32 s83, s61, 6\ns_add_u32 s80, s82, s83\ns_lshl_b32 s80, s80, 11
s_lshl_b32 s83, s61, 3\ns_add_u32 s81, s82, s83\ns_lshl_b32 s81, s81, 11
s_lshl_b32 s82, s37, 8\ns_lshl_b32 s83, s60, 7\ns_add_u32 s82, s82, s83
s_add_u32 s80, s80, s82\ns_add_u32 s81, s81, s82"""
    assert XN == 0
    for i in range(4): t = t.replace(f"s{80+i}", f"S{sb+i}")
    A(t.replace("S", "s"))
    A(f"v_and_b32 v{va}, 15, v1\nv_lshlrev_b32 v{va}, 3, v{va}\nv_lshrrev_b32 v{vb}, 4, v1\nv_lshlrev_b32 v{vb}, 11, v{vb}\nv_add_u32 v{vb}, v{vb}, v{va}")
def base_load_x():
    A(f"buffer_load_dwordx2 v[{DR2}:{DR2+1}], v5, s[12:15], s82 offen")
    for k in range(16):
        if k: A(f"s_add_u32 s80, s80, {4*2048}")
        A(f"buffer_load_dwordx2 v[{XR+2*k}:{XR+2*k+1}], v15, s[8:11], s80 offen")
def base_load_xn():
    for k in range(16):
        A(f"s_add_u32 s83, s81, {(16*(k & 7) + 4*(k >> 3))*2048}")
        r = xn_reg(k)
        A(f"buffer_load_dwordx2 v[{r}:{r+1}], v15, s[24:27], s83 offen")
DR2 = 6

def base_round(nb):
    its = []
    for j in range(4):
        k = 4*nb + j
        for h in range(2):
            its.append((XR + 2*k + h, xn_reg(k) + h, DU + 2*h, 32 + (nb % 2)*32 + 4*j + 2*h, 48 + (nb % 2)*32 + 4*j + 2*h))
    for (x, n, d, a, t) in its: A(f"v_lshlrev_b32 v{t}, 16, v{n}\nv_and_b32 v{t+1}, 0xffff0000, v{n}")
    for (x, n, d, a, t) in its: A(f"v_pk_mul_f32 v[{t}:{t+1}], v[{t}:{t+1}], v[{d}:{d+1}]")
    for (x, n, d, a, t) in its: A(f"v_lshlrev_b32 v{a}, 16, v{x}\nv_and_b32 v{a+1}, 0xffff0000, v{x}")
    for (x, n, d, a, t) in its: A(rnd(t, t) + "\n" + rnd(t+1, t+1))
    for (x, n, d, a, t) in its: A(f"v_pk_add_f32 v[{a}:{a+1}], v[{a}:{a+1}], v[{t}:{t+1}]")
    A("s_waitcnt lgkmcnt(0)")
    for j in range(4):
        a = 32 + (nb % 2)*32 + 4*j
        A(f"ds_write_b128 v27, v[{a}:{a+3}] offset:{j*4*TP}")
    A("s_waitcnt lgkmcnt(0)")
    for mb in range(4):
        a = ACC + (mb*4+nb)*4
        A(f"ds_read_b128 v[{a}:{a+3}], v28 offset:{mb*64}")

def tr_regions(n):
    ls = (n-1) % 4
    lo, hi = ls*32768, (ls+1)*32768
    r, p = [], 0
    while len(r) < 4:
        if p < hi and p + 64*TP > lo: p = hi
        r.append(p); p += 64*TP
    assert p <= K1_LDS
    return r

def pb_setup(is_recv, nsteps):
    A("v_mov_b32 v22, 0\nv_mov_b32 v23, 1\nv_lshlrev_b32 v21, 4, v1")
    A(f"s_lshl_b32 s69, s38, 2\ns_add_u32 s69, s69, s32\ns_lshl_b32 s70, s69, 6\ns_add_u32 s70, s70, {XF}\ns_lshl_b32 s69, s69, 14\ns_add_u32 s69, s69, {XCH}")
    rg = tr_regions(nsteps)
    A(f"s_mov_b32 s63, {rg[0]}")
    for w in range(1, 4): A(f"s_cmp_eq_u32 s32, {w}\ns_cselect_b32 s63, {rg[w]}, s63")
    A(f"s_mul_i32 s65, s32, {16*TP}\ns_add_u32 s65, s65, {BREG}")
    A("v_and_b32 v2, 15, v1\nv_lshrrev_b32 v3, 4, v1")
    A(f"v_mul_u32_u24 v5, {TP}, v2\nv_lshlrev_b32 v4, 4, v3\nv_add3_u32 v25, v5, v4, s63")
    if is_recv: A("v_add3_u32 v28, v5, v4, s65")
    A(f"v_mul_u32_u24 v5, {TP}, v3\nv_lshlrev_b32 v4, 4, v2\nv_add3_u32 v26, v5, v4, s63")
    if is_recv: A("v_add3_u32 v27, v5, v4, s65")
    A("v_lshlrev_b32 v20, 12, v3\nv_add_u32 v20, v20, v4")
    A("s_lshl_b32 s62, s43, 7\ns_lshl_b32 s63, s61, 6\ns_add_u32 s62, s62, s63")
    A("s_lshl_b32 s64, s37, 7\ns_lshl_b32 s63, s60, 6\ns_add_u32 s64, s64, s63")
    srd(28, 54, 2048*1024*4)

def ah_start(is_recv):
    if not AH2: return
    assert MAP == 1
    NA, NB, NO = (N1A, NB1, NB3) if is_recv else (N3A, NB3, NB1)
    srd(16, 20, 14680064)
    A("v_bfe_u32 v2, v1, 1, 4\nv_lshlrev_b32 v2, 12, v2\nv_and_b32 v3, 1, v1\nv_lshlrev_b32 v3, 7, v3\nv_add_u32 v18, v2, v3")
    A(f"s_and_b32 s46, s33, 1\ns_mul_i32 s46, s46, {NO}\ns_add_u32 s47, s46, {NB}\ns_lshl_b32 s47, s47, 18\ns_add_u32 s46, s46, s36\ns_lshl_b32 s46, s46, 2\ns_add_u32 s46, s46, s32\ns_lshl_b32 s46, s46, 16")
    A("s_lshl_b32 s44, s43, 8\ns_add_u32 s46, s46, s44")
    c0 = NA - AH2_L - (0 if is_recv else NUN)
    while c0 < 0:
        c0 += 8
        A(ahead_pair() + f"\ns_add_u32 s46, s46, {8 << 18}")
    A(f"s_mul_i32 s44, s32, {AH_WS}\ns_add_u32 s44, s44, {c0 + 1}")

def flag_store(flag_s):
    return (f"s_mov_b64 s[74:75], exec\ns_mov_b64 exec, 1\nbuffer_store_dword v23, v22, s[24:27], s{flag_s} offen sc1\ns_mov_b64 exec, s[74:75]")

def transpose_acc():
    A("s_nop 7\ns_nop 3")
    for nb in range(4):
        for mb in range(4):
            a = ACC + (mb*4+nb)*4
            A(f"ds_write_b128 v25, v[{a}:{a+3}] offset:{nb*16*TP + mb*64}")
    A("s_waitcnt lgkmcnt(0)")
    for k in range(16):
        A(f"ds_read_b128 v[{FR+4*k}:{FR+4*k+3}], v26 offset:{k*4*TP}")

GC0 = -2.0 * 0.7978845608028654 * LOG2E
GC1 = GC0 * 0.044715
def gelu_pk(prs):
    for (r, b, t, d) in prs: A(rnd(t, r) + "\n" + rnd(t+1, r+1))
    for (r, b, t, d) in prs: A(f"v_pk_add_f32 v[{t}:{t+1}], v[{t}:{t+1}], v[{b}:{b+1}]")
    for (r, b, t, d) in prs: A(rnd(t, t) + "\n" + rnd(t+1, t+1))
    for (r, b, t, d) in prs: A(f"v_pk_mul_f32 v[{t+2}:{t+3}], v[{t}:{t+1}], v[{t}:{t+1}]")
    for (r, b, t, d) in prs: A(f"v_pk_fma_f32 v[{t+2}:{t+3}], v[{t+2}:{t+3}], v[28:29], v[28:29] op_sel:[0,0,1] op_sel_hi:[1,0,1]")
    for (r, b, t, d) in prs: A(f"v_pk_mul_f32 v[{t+2}:{t+3}], v[{t+2}:{t+3}], v[{t}:{t+1}]")
    for (r, b, t, d) in prs: A(f"v_exp_f32 v{t+2}, v{t+2}\nv_exp_f32 v{t+3}, v{t+3}")
    for (r, b, t, d) in prs: A(f"v_pk_add_f32 v[{t+2}:{t+3}], v[{t+2}:{t+3}], v[30:31] op_sel:[0,0] op_sel_hi:[1,0]")
    for (r, b, t, d) in prs: A(f"v_rcp_f32 v{t+2}, v{t+2}\nv_rcp_f32 v{t+3}, v{t+3}")
    for (r, b, t, d) in prs: A(f"v_pk_mul_f32 v[{t}:{t+1}], v[{t}:{t+1}], v[{t+2}:{t+3}]")
    for (r, b, t, d) in prs: A(f"v_cvt_pk_bf16_f32 v{d}, v{t}, v{t+1}")
def gelu_sc(prs):
    F = []
    def each(fn, c=4):
        for p in prs:
            for h in range(2): F.append((fn(p, h), c))
    each(lambda p, h: rnd(p[2]+h, p[0]+h))
    each(lambda p, h: f"v_add_f32 v{p[2]+h}, v{p[2]+h}, v{p[1]+h}")
    each(lambda p, h: rnd(p[2]+h, p[2]+h))
    each(lambda p, h: f"v_mul_f32 v{p[2]+2+h}, v{p[2]+h}, v{p[2]+h}")
    each(lambda p, h: f"v_fma_f32 v{p[2]+2+h}, v{p[2]+2+h}, v28, v29")
    each(lambda p, h: f"v_mul_f32 v{p[2]+2+h}, v{p[2]+2+h}, v{p[2]+h}")
    each(lambda p, h: f"v_exp_f32 v{p[2]+2+h}, v{p[2]+2+h}", 8)
    each(lambda p, h: f"v_add_f32 v{p[2]+2+h}, 1.0, v{p[2]+2+h}")
    each(lambda p, h: f"v_rcp_f32 v{p[2]+2+h}, v{p[2]+2+h}", 8)
    each(lambda p, h: f"v_mul_f32 v{p[2]+h}, v{p[2]+h}, v{p[2]+2+h}")
    for p in prs: F.append((f"v_cvt_pk_bf16_f32 v{p[3]}, v{p[2]}, v{p[2]+1}", 4))
    return F

def gen_k1():
    kernel_begin("k1_kernel")
    A("s_cmp_ge_u32 s2, 256\ns_cbranch_scc1 K1_end")
    A(f"s_load_dwordx2 s[56:57], s[0:1], {KA['x']}")
    A(f"s_load_dwordx2 s[52:53], s[0:1], {KA['ws']}")
    A(f"s_load_dwordx4 s[44:47], s[0:1], {KA['bre']}")
    A(f"s_load_dwordx4 s[48:51], s[0:1], {KA['w1']}")
    A(f"s_load_dwordx2 s[54:55], s[0:1], {KA['out']}")
    A(f"s_load_dwordx2 s[58:59], s[0:1], {KA['dsk']}")
    A(f"s_load_dwordx4 s[4:7], s[0:1], {KA['cre']}")
    A(f"s_load_dwordx4 s[20:23], s[0:1], {KA['w2']}")
    A(f"s_load_dwordx4 s[76:79], s[0:1], {KA['lre']}")
    A(f"s_load_dwordx2 s[80:81], s[0:1], {KA['ldt']}")
    A("v_lshrrev_b32 v2, 6, v0\nv_and_b32 v1, 63, v0")
    A("v_readfirstlane_b32 s32, v2")
    if CPF:
        A("s_getpc_b64 s[82:83]\nK1_pc:")
        A("s_cmp_lt_u32 s32, 4\ns_cbranch_scc1 K1_nopf")
        A("s_lshr_b32 s62, s2, 2\ns_andn2_b32 s62, s62, 1\ns_add_u32 s62, s62, s32\ns_and_b32 s62, s62, 7\ns_lshl_b32 s62, s62, 13")
        A("v_lshlrev_b32 v3, 7, v1\nv_add_u32 v3, s62, v3\nv_min_u32 v3, K1_code_end-K1_pc-4, v3")
        A("global_load_dword v60, v3, s[82:83]")
        A("K1_nopf:")
    if MAP == 0:
        A("s_and_b32 s33, s2, 7\ns_lshr_b32 s34, s2, 3")
        A("s_and_b32 s35, s34, 3\ns_bfe_u32 s36, s34, 0x20002")
        A("s_add_u32 s88, s35, s36")
        A("s_and_b32 s62, s33, 1\ns_lshl_b32 s62, s62, 2\ns_add_u32 s39, s62, s35")
        A("s_lshr_b32 s62, s33, 1\ns_lshl_b32 s62, s62, 2\ns_add_u32 s40, s62, s36")
        SWB = P("SWB", 0)
        A(f"s_add_u32 s43, s62, s{36 if SWB == 1 else 35}")
        if SWB >= 2: A(f"s_xor_b32 s43, s43, {SWB-1}")
        A("s_and_b32 s62, s33, 3\ns_lshl_b32 s62, s62, 2\ns_add_u32 s41, s62, s35")
        A("s_lshr_b32 s62, s33, 2\ns_lshl_b32 s62, s62, 2\ns_add_u32 s42, s62, s36")
        A("s_lshr_b32 s62, s34, 4\ns_xor_b32 s62, s62, s33\ns_and_b32 s62, s62, 1\ns_xor_b32 s62, s62, 1\ns_lshl_b32 s62, s62, 2\ns_add_u32 s37, s62, s" + ("35" if SWB == 1 else "36"))
        A("s_lshr_b32 s34, s34, 4\ns_and_b32 s3, s2, 127")
        if P("MAP2", 0):
            A("s_lshr_b32 s62, s33, 1\ns_lshr_b32 s63, s33, 2\ns_xor_b32 s43, s62, s63\ns_and_b32 s43, s43, 1\ns_lshl_b32 s43, s43, 2\ns_add_u32 s43, s43, s35")
            A("s_andn2_b32 s64, 1, s33\ns_lshl_b32 s64, s64, 3\ns_add_u32 s43, s43, s64")
            A("s_xor_b32 s37, s63, s34\ns_lshl_b32 s37, s37, 2\ns_add_u32 s37, s37, s36")
            A(f"s_xor_b32 s33, s62, {P('MAP2P', 1)}")
    else:
        A("s_lshr_b32 s63, s2, 3\ns_bfe_u32 s62, s2, 0x20001")
        A("s_and_b32 s35, s63, 3\ns_lshr_b32 s36, s63, 2")
        A("s_lshl_b32 s88, s35, 1\ns_add_u32 s88, s88, s36")
        A("s_lshl_b32 s3, s62, 5\ns_add_u32 s3, s3, s63")
        A("s_lshl_b32 s41, s62, 2\ns_add_u32 s41, s41, s35\ns_mov_b32 s42, s36")
        A("s_mov_b32 s43, s41\ns_mov_b32 s37, s36")
        A("s_and_b32 s39, s62, 1\ns_lshl_b32 s39, s39, 2\ns_add_u32 s39, s39, s35")
        A("s_lshr_b32 s40, s62, 1\ns_lshl_b32 s40, s40, 3\ns_add_u32 s40, s40, s36")
        A(f"s_and_b32 s34, s2, 1\ns_xor_b32 s33, s34, {PPAR}")
    A("s_lshl_b32 s38, s43, 3\ns_add_u32 s38, s38, s37")
    A("s_mov_b32 s99, 0")
    A("s_lshr_b32 s60, s32, 1\ns_and_b32 s61, s32, 1")
    A("s_waitcnt lgkmcnt(0)")
    srd(8, 44, 2097152)
    srd(12, 46, 2097152)
    srd(16, 48, 14680064)
    srd(24, 52, WS_SIZE)
    srd(28, 50, 7168)
    stamp(0)
    A("s_cmp_ge_u32 s32, 4\ns_cbranch_scc1 K1_prod")
    ln_issue()
    A(f"s_lshl_b32 s85, s42, 8\ns_lshl_b32 s62, s41, 4\ns_add_u32 s85, s85, s62\ns_lshl_b32 s62, s32, 2\ns_add_u32 s85, s85, s62\ns_add_u32 s85, s85, {UF}")
    A(f"s_lshl_b32 s74, s38, 2\ns_add_u32 s74, s74, s32\ns_lshl_b32 s74, s74, 6\ns_add_u32 s74, s74, {XF}")
    A("s_lshl_b32 s62, s40, 6\ns_lshl_b32 s63, s61, 5\ns_add_u32 s62, s62, s63")
    A("s_lshl_b32 s70, s39, 1\ns_add_u32 s70, s70, s60")
    A(f"s_lshl_b32 s75, s70, 8\ns_lshl_b32 s63, s40, 3\ns_add_u32 s75, s75, s63\ns_lshl_b32 s63, s61, 2\ns_add_u32 s75, s75, s63\ns_add_u32 s75, s75, {HTF}")
    A(f"s_lshl_b32 s63, s62, 3\ns_lshl_b32 s64, s70, 13\ns_add_u32 s63, s63, s64\ns_add_u32 s63, s63, {AGG}")
    A("s_cmp_eq_u32 s34, 1\ns_cselect_b32 s85, s75, s85\ns_cselect_b32 s74, s63, s74\ns_cselect_b32 s63, -1, 0\ns_cselect_b32 s64, 0xffff, 1\ns_mov_b32 s65, 0")
    A("v_mov_b32 v22, 0\nv_mov_b32 v4, s63\nv_mov_b32 v5, s63\nv_mov_b32 v6, s63\nv_mov_b32 v7, s63\nv_lshlrev_b32 v8, 4, v1")
    A("s_mov_b64 exec, 1\nbuffer_store_dword v22, v22, s[24:27], s85 offen sc1\ns_mov_b64 exec, s[64:65]\nbuffer_store_dwordx4 v[4:7], v8, s[24:27], s74 offen sc1\ns_mov_b64 exec, -1")
    ln_compute(2)
    A("s_cmp_eq_u32 s34, 1\ns_cbranch_scc1 K1_g1")
    A("s_mul_i32 s62, s41, 448")
    A("s_lshl_b32 s63, s60, 8\ns_add_u32 s63, s63, s62")
    A("v_lshrrev_b32 v16, 4, v1\nv_lshlrev_b32 v17, 3, v16")
    for lb in range(6):
        A(f"buffer_load_dwordx2 v[{240+2*lb}:{241+2*lb}], v17, s[28:31], s63 offen offset:{32*lb}")
    for lb in (6, 7):
        A(f"buffer_load_dwordx2 v[{240+2*lb}:{241+2*lb}], v17, s[28:31], s62 offen offset:{32*lb}")
    srd(8, 22, 4096)
    A("s_lshl_b32 s62, s43, 8\ns_lshl_b32 s63, s61, 7\ns_add_u32 s62, s62, s63\nv_and_b32 v16, 15, v1\nv_lshlrev_b32 v16, 1, v16")
    for nb in range(4):
        A(f"buffer_load_ushort v{24+nb}, v16, s[8:11], s62 offen offset:{32*nb}")
    if PT3:
        NSH = 32 if MAP else 16
        A("v_min_u32 v18, 55, v1\nv_mul_u32_u24 v19, 4682, v18\nv_lshrrev_b32 v19, 16, v19\nv_mul_u32_u24 v20, 14, v19\nv_sub_u32 v18, v18, v20")
        A("v_mul_u32_u24 v19, 7168, v19\nv_lshlrev_b32 v18, 7, v18\nv_add_u32 v19, v19, v18")
        A("s_lshr_b32 s62, s41, 2\ns_mul_i32 s62, s62, 1792")
        A(f"s_lshr_b32 s63, s2, 3\ns_and_b32 s63, s63, {NSH-1}\ns_mul_i32 s64, s32, {NSH}\ns_add_u32 s63, s63, s64\ns_mul_i32 s63, s63, {4*7168}\ns_add_u32 s62, s62, s63")
        A(f"s_add_u32 s62, s62, {P('PT3_S', 3)*64*7168}")
        for i in range(PT3):
            if i >= P('PT_INF', 2): A(f"s_waitcnt vmcnt({P('PT_INF', 2)-1})")
            A(f"buffer_load_dword v20, v19, s[16:19], s62 offen\ns_add_u32 s62, s62, {4*NSH*4*7168}")
    A("s_lshl_b32 s71, s60, 1")
    C3.addr_setup(sq=71)
    zero_regs(ACC, 112)
    A(f"s_mul_i32 s70, s42, {56*16384}\ns_lshl_b32 s72, s61, 13\ns_add_u32 s70, s70, s72\ns_add_u32 s70, s70, {U}")
    A("s_mul_i32 s72, s41, 7\ns_lshl_b32 s73, s60, 2\ns_add_u32 s73, s73, s72")
    for pr in range(4):
        if pr < 3: A(f"s_add_u32 s74, s73, {pr}")
        else: A("s_add_u32 s74, s72, 3")
        A(f"s_lshr_b32 s75, s74, 1\ns_lshl_b32 s75, s75, 14\ns_and_b32 s74, s74, 1\ns_lshl_b32 s74, s74, 10\ns_add_u32 s74, s74, s75\ns_add_u32 s{76+pr}, s74, s70")
    for nb in range(4):
        A(f"s_xor_b32 s{80+nb}, s71, {nb}\ns_lshl_b32 s{80+nb}, s{80+nb}, 11")
    A(f"v_mov_b32 v28, {f32(GC1)}\nv_mov_b32 v29, {f32(GC0)}\nv_mov_b32 v30, 1.0\nv_mov_b32 v31, 1.0\nv_lshlrev_b32 v21, 4, v1")
    A(f"s_mov_b32 s86, {NB3-1}\ns_mov_b32 s87, 3")
    if AH1:
        assert MAP == 1
        A("v_lshrrev_b32 v2, 2, v1\nv_mul_u32_u24 v2, 7168, v2\nv_and_b32 v3, 3, v1\nv_lshlrev_b32 v3, 7, v3\nv_add_u32 v18, v2, v3")
        A(f"s_add_u32 s46, s36, 8\ns_lshl_b32 s46, s46, 2\ns_add_u32 s46, s46, s32\ns_mul_i32 s46, s46, {16*7168}\ns_mul_i32 s47, s41, 448\ns_add_u32 s46, s46, s47")
        A(f"s_mov_b32 s47, 14680064\ns_mul_i32 s44, s32, {AH_WS}\ns_add_u32 s44, s44, {AH1_J}")
    A("s_barrier")
    C3.loop("K1_g3", 32, xbar=True, hook=ahead_hook("K1_g3", 8*64*7168) if AH1 else None)
    A("s_waitcnt vmcnt(0)")
    stamp(1)
    ah_start(False)
    BI = lambda lb: (32 + 4*lb) if lb < 4 else (112 + 4*(lb-4))
    for lb in range(8):
        for h in range(2):
            A(f"v_lshlrev_b32 v{BI(lb)+2*h}, 16, v{240+2*lb+h}\nv_and_b32 v{BI(lb)+2*h+1}, 0xffff0000, v{240+2*lb+h}")
    def group(pr, nb, TB):
        prs = []
        blk0 = (2*pr)*4 + nb if pr < 3 else 24 + nb
        st = ACC + blk0*4
        for e in range(2):
            lb = 2*pr + e
            blk = lb*4 + nb if pr < 3 else 24 + e*2 + nb
            for h in range(2):
                prs.append((ACC + blk*4 + 2*h, BI(lb) + 2*h, TB + (2*e+h)*4, st + 2*e + h))
        return prs, f"s_add_u32 s84, s{76+pr}, s{80+nb}\nbuffer_store_dwordx4 v[{st}:{st+3}], v21, s[24:27], s84 offen sc1"
    GL = [(pr, nb) for pr in range(4) for nb in range(4 if pr < 3 else 2)]
    if BASE3:
        assert NP1 == 14 and not AH2
        GL = GL[::-1]
    B3S = P("B3S", 5); B3N = P("B3N", 2)
    nld = 0
    for gi, (pr, nb) in enumerate(GL[:NP1]):
        prs, stq = group(pr, nb, 64 + (gi & 1)*16)
        gelu_pk(prs)
        A(stq)
        if BASE3 and gi == B3S:
            assert B3S >= 5
            base_setup(226, 227, 44)
            A(f"buffer_load_dwordx2 v[224:225], v226, s[12:15], s46 offen")
        if BASE3 and gi >= B3S:
            for k in range(nld, 16 if gi == 13 else min(nld + B3N, 16)):
                if k: A(f"s_add_u32 s44, s44, {4*2048}")
                A(f"buffer_load_dwordx2 v[{XR+2*k}:{XR+2*k+1}], v227, s[8:11], s44 offen{NTX2}")
                A(f"s_add_u32 s47, s45, {(16*(k & 7) + 4*(k >> 3))*2048}")
                A(f"buffer_load_dwordx2 v[{192+2*k}:{193+2*k}], v227, s[24:27], s47 offen")
                nld = k + 1
    stamp(2)
    for nb in range(4):
        A(f"v_lshlrev_b32 v{240+4*nb}, 16, v{24+nb}")
        for i in range(1, 4): A(f"v_lshlrev_b32 v{240+4*nb+i}, 16, v{24+nb}")
    pb_setup(False, N3A + NB3)
    CB.addr_setup()
    CA.addr_setup()
    stamp(5, t=(2, 3, 4))
    CA.start()
    stamp(6, t=(2, 3, 4))
    F = []
    for pr, nb in GL[NP1:]:
        prs, stq = group(pr, nb, 96)
        F += gelu_sc(prs) + [(stq, 8)]
    tot = max(sum(c for _, c in F), 1)
    parts = [[] for _ in range(2*NUN)]
    acc = 0
    for x in F:
        parts[min(int(acc*NGS/tot), NGS-1)].append(x); acc += x[1]
    parts[2*NUN-1].append(("s_waitcnt vmcnt(0)\n" + flag_store(85), 4))
    for i in range(NUN):
        CA.substep(0, CA.reads(1), False, False, fill=parts[2*i], csrc=(lambda mb, nb: f"v[{240+4*nb}:{243+4*nb}]") if i == 0 else None)
        CA.substep(1, CA.reads(0), True, True, fill=parts[2*i+1])
    stamp(4, t=(2, 3, 4))
    A(f"s_mov_b32 s92, {N3A-NUN-1}\ns_branch K1_yA_loop")
    A("K1_prod:")
    SP3 = P("SP3", 0); SP1 = P("SP1", 0)
    if SP3 or SP1:
        srd(92, 20, 14680064)
        A(f"s_lshl_b32 s99, s3, 1\ns_add_u32 s99, s99, s32\ns_sub_u32 s99, s99, 4\ns_mul_i32 s99, s99, {(SP3*29 + SP1*13)*128}\ns_mul_i32 s62, s34, {SP3*29*128}\ns_add_u32 s99, s99, s62")
    A("s_cmp_eq_u32 s34, 1\ns_cbranch_scc1 K1_g1prod")
    voff_T224(7168, 8)
    voff_T128(2048, 16)
    A("s_mul_i32 s86, s41, 448")
    A(f"s_lshl_b32 s89, s42, 8\ns_add_u32 s89, s89, {H2}")
    itA = [(16, 8 + j % 7, 81, (j//7)*16*7168, j*1024) for j in range(28)]
    itB = [(24, 16 + (j & 1), 82, j*4*2048, C3.AB + j*1024) for j in range(16)]
    def st3():
        rot_index()
        A(f"s_mul_i32 s81, s85, {64*7168}\ns_add_u32 s81, s81, s86\ns_lshl_b32 s82, s85, 17\ns_add_u32 s82, s82, s89")
    allit = itA + itB
    A(f"s_and_b32 s78, s33, 1\ns_mul_i32 s66, s78, {N1A}\ns_mul_i32 s78, s78, {NB1}\ns_sub_u32 s78, s78, {N3A}\ns_mov_b32 s79, {(N3A+NB3)//RG*RG}\ns_mov_b32 s69, {(N3A+NB3)//4*4}")
    A(f"s_mov_b32 s67, {N3A-4}\ns_mov_b32 s68, {NB3}")
    if NTF1: A("v_lshrrev_b32 v2, 2, v1\nv_mul_u32_u24 v2, 7168, v2\nv_and_b32 v3, 3, v1\nv_lshlrev_b32 v3, 7, v3\nv_add_u32 v22, v2, v3")
    A("s_cmp_eq_u32 s32, 5\ns_cbranch_scc1 K1_g3p1")
    isws = lambda x: x[0] == 24
    pre3 = None
    CPOL[0] = NTW1
    if NTF1: PRE[0] = [(16, 22, 81, g*16*7168) for g in range(3)]
    producer("K1_g3p0", C3, with_spf(allit[:22], SP3), 32, st3, isws, False, pre3, E3)
    voff_N(2048, 8)
    A("s_branch K1_pb_a\nK1_g3p1:")
    if NTF1: PRE[0] = [(16, 22, 81, 3*16*7168)]
    producer("K1_g3p1", C3, with_spf(allit[22:], SP3), 32, st3, isws, True, None, E3)
    PRE[0] = None
    A("s_branch K1_pb_b")
    A("K1_g1:")
    srd(12, 76, 2048); srd(16, 78, 2048); srd(28, 80, 2048)
    A("v_and_b32 v2, 15, v1\nv_lshlrev_b32 v2, 1, v2\ns_lshl_b32 s63, s62, 1")
    for ch in range(2):
        for i, sr in enumerate((12, 16, 28)):
            A(f"buffer_load_ushort v{32+4*ch+i}, v2, s[{sr}:{sr+3}], s63 offen offset:{32*ch}")
    C1.addr_setup()
    zero_regs(ACC, 128)
    A(f"s_mov_b32 s86, {NB1-4}\ns_mov_b32 s87, 0")
    A("s_barrier")
    A("s_waitcnt vmcnt(0)")
    for ch in range(2): coef(32+4*ch, 16+8*ch, 40)
    C1.loop("K1_g1", 16, xbar=True)
    stamp(1)
    A("s_nop 7\ns_waitcnt vmcnt(0)")
    CO = [16, 24]
    zre = lambda ch, t: ACC + ((t//4)*4 + 2*ch)*4 + t % 4
    zim = lambda ch, t: ACC + ((t//4)*4 + 2*ch + 1)*4 + t % 4
    cur = [(zre(0, 0), zim(0, 0)), (zre(1, 0), zim(1, 0))]
    bufs = [[(32, 33), (34, 35)], [(36, 37), (38, 39)]]
    for t in range(1, 32):
        for ch in range(2):
            n = bufs[ch][t % 2]; c = cur[ch]; a = CO[ch]
            A(f"v_fma_f32 v{n[0]}, v{a}, v{c[0]}, v{zre(ch,t)}\nv_fma_f32 v{n[1]}, v{a}, v{c[1]}, v{zim(ch,t)}")
        for ch in range(2):
            n = bufs[ch][t % 2]; c = cur[ch]; a = CO[ch]
            A(f"v_fma_f32 v{n[0]}, -v{a+1}, v{c[1]}, v{n[0]}\nv_fma_f32 v{n[1]}, v{a+1}, v{c[0]}, v{n[1]}")
            cur[ch] = n
    A("v_and_b32 v2, 15, v1\nv_lshlrev_b32 v2, 2, v2\nv_lshrrev_b32 v3, 4, v1")
    for ch in range(2):
        for g in range(4):
            for h in range(2):
                A(f"ds_bpermute_b32 v{40+ch*8+2*g+h}, v2, v{cur[ch][h]} offset:{64*g}")
    for ch in range(2):
        a = CO[ch] + 4; d = 56 + ch*4
        cmul(d, d+1, a, a+1, a, a+1)
        cmul(d+2, d+3, d, d+1, a, a+1)
    A("v_lshlrev_b32 v8, 2, v2")
    A("s_lshl_b32 s70, s39, 1\ns_add_u32 s70, s70, s60")
    A(f"s_lshl_b32 s71, s62, 3\ns_add_u32 s71, s71, {AGG}")
    A("s_lshl_b32 s72, s70, 13\ns_add_u32 s72, s72, s71")
    A("v_mov_b32 v4, 0x7fc00000")
    A("s_waitcnt lgkmcnt(0)")
    for ch in range(2):
        e = 40 + ch*8; a = CO[ch] + 4
        cfma(e+2, e+3, a, a+1, e, e+1, e+2, e+3)
        cfma(e+4, e+5, a, a+1, e+2, e+3, e+4, e+5)
        cfma(e+6, e+7, a, a+1, e+4, e+5, e+6, e+7)
    for i, r in enumerate((46, 47, 54, 55)):
        A(f"v_cmp_eq_u32 vcc, -1, v{r}\ns_nop 1\nv_cndmask_b32 v{76+i}, v{r}, v4, vcc")
    A("s_mov_b64 s[74:75], exec\ns_mov_b64 exec, 0xffff")
    A("buffer_store_dwordx4 v[76:79], v8, s[24:27], s72 offen sc1")
    A("s_mov_b64 exec, s[74:75]")
    A("s_sub_u32 s72, s70, 1\nv_sub_u32 v4, s72, v3\nv_lshlrev_b32 v4, 13, v4\nv_add_u32 v4, v4, v8\nv_mov_b32 v5, 0x40000000")
    for m in range(4):
        A(f"v_subrev_u32 v6, {m*32768}, v4\nv_cmp_gt_i32 vcc, 0, v6\ns_nop 1\nv_cndmask_b32 v{10+m}, v6, v5, vcc")
    SETS = [96, 112][:NPOLL]
    def poll_issue(s):
        for m in range(4):
            A(f"buffer_load_dwordx4 v[{s+4*m}:{s+4*m+3}], v{10+m}, s[24:27], s71 offen{PP_A}")
    poll_issue(SETS[0])
    A("v_mov_b32 v32, 0\nv_mov_b32 v33, 0\nv_mov_b32 v34, 0\nv_mov_b32 v35, 0\nv_mov_b32 v36, 1.0\nv_mov_b32 v37, 0\nv_mov_b32 v38, 1.0\nv_mov_b32 v39, 0")
    for ch in range(2):
        a = CO[ch] + 6
        cmul(64+2*ch, 65+2*ch, a, a+1, a, a+1)
        cmul(68+2*ch, 69+2*ch, 64+2*ch, 65+2*ch, a, a+1)
        cmul(72+2*ch, 73+2*ch, 64+2*ch, 65+2*ch, 64+2*ch, 65+2*ch)
    A("v_mov_b32 v88, 1.0\nv_mov_b32 v89, 0\nv_mov_b32 v90, 1.0\nv_mov_b32 v91, 0")
    for g in range(1, 4):
        A(f"v_cmp_eq_u32 vcc, {g}, v3\ns_nop 1")
        for ch in range(2):
            pr = 40 + ch*8 + 2*(g-1)
            mr = CO[ch] + 4 if g == 1 else 56 + ch*4 + 2*(g-2)
            gr = CO[ch] + 6 if g == 1 else 64 + 4*(g-2) + 2*ch
            A(f"v_cndmask_b32 v{32+2*ch}, v{32+2*ch}, v{pr}, vcc\nv_cndmask_b32 v{33+2*ch}, v{33+2*ch}, v{pr+1}, vcc")
            A(f"v_cndmask_b32 v{36+2*ch}, v{36+2*ch}, v{mr}, vcc\nv_cndmask_b32 v{37+2*ch}, v{37+2*ch}, v{mr+1}, vcc")
            A(f"v_cndmask_b32 v{88+2*ch}, v{88+2*ch}, v{gr}, vcc\nv_cndmask_b32 v{89+2*ch}, v{89+2*ch}, v{gr+1}, vcc")
    if not BASE3: base_setup()
    A("v_lshlrev_b32 v9, 4, v1\nv_xor_b32 v14, 64, v9")
    A(f"s_lshl_b32 s76, s70, 19\ns_lshl_b32 s73, s40, 14\ns_add_u32 s76, s76, s73\ns_lshl_b32 s73, s61, 13\ns_add_u32 s76, s76, s73\ns_add_u32 s76, s76, {HT}")
    A(f"s_add_u32 s77, s76, {16*16384}\ns_add_u32 s78, s76, 4096\ns_add_u32 s79, s77, 4096")
    for s in SETS[1:]:
        A("s_sleep 2")
        poll_issue(s)
    A("s_mov_b32 s73, 0x40000")
    A("K1_retry:")
    for si, s in enumerate(SETS):
        A(f"s_waitcnt vmcnt({4*(len(SETS)-1)})")
        A(f"v_max3_u32 v4, v{s}, v{s+1}, v{s+2}")
        for q in range(3, 15, 2): A(f"v_max3_u32 v4, v4, v{s+q}, v{s+q+1}")
        A(f"v_max_u32 v4, v4, v{s+15}")
        A(f"v_cmp_eq_u32 vcc, -1, v4\ns_cmp_eq_u64 vcc, 0\ns_cbranch_scc1 K1_use{si}")
        if len(SETS) == 1: A("s_sleep 4")
        poll_issue(s)
    A("s_sub_u32 s73, s73, 1\ns_cmp_lg_u32 s73, 0\ns_cbranch_scc1 K1_retry")
    A("s_waitcnt vmcnt(0)")
    for si, s in enumerate(SETS):
        A(f"K1_use{si}:")
        for ch in range(2):
            a4 = 72 + 2*ch
            cfma(84+2*ch, 85+2*ch, a4, a4+1, s+12+2*ch, s+13+2*ch, s+8+2*ch, s+9+2*ch)
            cfma(80+2*ch, 81+2*ch, a4, a4+1, 84+2*ch, 85+2*ch, s+4+2*ch, s+5+2*ch)
            cfma(84+2*ch, 85+2*ch, a4, a4+1, 80+2*ch, 81+2*ch, s+2*ch, s+1+2*ch)
        if si < len(SETS)-1: A("s_branch K1_gotall")
    A("K1_gotall:")
    for ch in range(2):
        cmul(40+2*ch, 41+2*ch, 88+2*ch, 89+2*ch, 84+2*ch, 85+2*ch)
    for op in ("v_permlane32_swap_b32", "v_permlane16_swap_b32"):
        for i in range(4): A(f"v_mov_b32 v{80+i}, v{40+i}")
        A("s_nop 1")
        for i in range(4): A(f"{op} v{40+i}, v{80+i}")
        A("s_nop 1")
        for i in range(4): A(f"v_add_f32 v{40+i}, v{40+i}, v{80+i}")
    stamp(2, t=(2, 3, 4))
    for ch in range(2):
        cfma(44+4*ch, 45+4*ch, 36+2*ch, 37+2*ch, 40+2*ch, 41+2*ch, 32+2*ch, 33+2*ch)
    cur = [(44, 45), (48, 49)]; nxt = [(46, 47), (50, 51)]
    for q in range(4):
        stg = 64 + (q % 2)*16
        for e in range(4):
            for u in range(2):
                t = q*8 + 2*e + u
                for ch in range(2):
                    a = CO[ch]; n = nxt[ch]; c = cur[ch]
                    A(f"v_fma_f32 v{n[0]}, v{a}, v{c[0]}, v{zre(ch,t)}\nv_fma_f32 v{n[1]}, v{a}, v{c[1]}, v{zim(ch,t)}")
                for ch in range(2):
                    a = CO[ch]; n = nxt[ch]; c = cur[ch]
                    A(f"v_fma_f32 v{n[0]}, -v{a+1}, v{c[1]}, v{n[0]}\nv_fma_f32 v{n[1]}, v{a+1}, v{c[0]}, v{n[1]}")
                    cur[ch], nxt[ch] = n, c
                for ch in range(2):
                    a = CO[ch]; c = cur[ch]; o = 52 + ch*4 + 2*u
                    A(f"v_mul_f32 v{o}, v{a+2}, v{c[0]}\nv_mul_f32 v{o+1}, -v{a+2}, v{c[1]}")
                for ch in range(2):
                    a = CO[ch]; c = cur[ch]; o = 52 + ch*4 + 2*u
                    A(f"v_fma_f32 v{o}, -v{a+3}, v{c[1]}, v{o}\nv_fma_f32 v{o+1}, -v{a+3}, v{c[0]}, v{o+1}")
            for ch in range(2):
                o = 52 + ch*4
                A(f"v_cvt_pk_bf16_f32 v{stg+ch*8+e}, v{o}, v{o+2}\nv_cvt_pk_bf16_f32 v{stg+ch*8+4+e}, v{o+1}, v{o+3}")
        for i, sr in enumerate((76, 77, 78, 79)):
            A(f"buffer_store_dwordx4 v[{stg+4*i}:{stg+4*i+3}], v{14 if q & 1 else 9}, s[24:27], s{sr} offen offset:{1024*q} sc1")
        if BASE_MODE == 1:
            if q == BXQ: base_load_x()
            if q == 1: base_load_xn()
    stamp(3, t=(2, 3, 4))
    if BASE3:
        pb_setup(True, N1A + NB1)
        zero_regs(ACC, 64)
        CB.addr_setup()
        CA.addr_setup()
        A("s_waitcnt vmcnt(0)")
        A(flag_store(85))
        stamp(4, t=(2, 3, 4))
    elif BASE_MODE == 1:
        pb_setup(True, N1A + NB1)
        A("s_waitcnt vmcnt(8)")
        for i in range(2):
            A(f"v_lshlrev_b32 v{DU+2*i}, 16, v{DR2+i}\nv_and_b32 v{DU+2*i+1}, 0xffff0000, v{DR2+i}")
        for nb in range(4):
            if nb == FLAG_AT:
                A("s_waitcnt vmcnt(0)")
                A(flag_store(85))
                stamp(4, t=(2, 3, 4))
            base_round(nb)
    else:
        A(f"buffer_load_dwordx2 v[{DR2}:{DR2+1}], v5, s[12:15], s82 offen")
        def ldk(k):
            if k: A(f"s_add_u32 s80, s80, {4*2048}")
            A(f"buffer_load_dwordx2 v[{XR+2*k}:{XR+2*k+1}], v15, s[8:11], s80 offen{NTX2}")
            A(f"s_add_u32 s83, s81, {(16*(k & 7) + 4*(k >> 3))*2048}")
            r = xn_reg(k)
            A(f"buffer_load_dwordx2 v[{r}:{r+1}], v15, s[24:27], s83 offen")
        for k in range(FLAG_AT): ldk(k)
        pb_setup(True, N1A + NB1)
        A(f"s_waitcnt vmcnt({1 + 2*FLAG_AT})")
        A(flag_store(85))
        for k in range(FLAG_AT, 16): ldk(k)
        stamp(4, t=(2, 3, 4))
        for nb in range(4):
            A(f"s_waitcnt vmcnt({24 - 8*nb})")
            if nb == 0:
                for i in range(2):
                    A(f"v_lshlrev_b32 v{DU+2*i}, 16, v{DR2+i}\nv_and_b32 v{DU+2*i+1}, 0xffff0000, v{DR2+i}")
            base_round(nb)
    if not BASE3:
        CB.addr_setup()
        CA.addr_setup()
    ah_start(True)
    A("s_waitcnt lgkmcnt(0)")
    stamp(5)
    CA.start()
    stamp(6)
    A(f"s_mov_b32 s92, {N1A-1}")
    CA.body("K1_yA", ahead_hook("K1_yA", 8 << 18) if AH2 else None)
    CA.substep(0, CA.reads(1), False, False)
    CA.substep(1, CB.reads(0), True, True, updv=False)
    stamp(7)
    A("s_mov_b32 s92, s86\ns_mov_b32 s91, s87")
    CB.body("K1_yB", ahead_hook("K1_yB", 8 << 18) if AH2 else None)
    A("s_cmp_ge_u32 s91, 2\ns_cbranch_scc1 K1_yB_tail")
    A("s_cmp_eq_u32 s91, 1\ns_cbranch_scc1 K1_yB_ph1")
    A("buffer_load_dword v24, v22, s[24:27], s70 offen sc1")
    A("s_mov_b32 s92, 2\ns_mov_b32 s91, 1\ns_branch K1_yB_loop")
    A("K1_yB_ph1:")
    A("s_waitcnt vmcnt(0)\nv_readfirstlane_b32 s71, v24\ns_mov_b32 s92, 1\ns_mov_b32 s91, 2\ns_cmp_lg_u32 s71, 1\ns_cbranch_scc1 K1_yB_loop")
    def pd_loads():
        for i in range(16):
            if i % 4 == 0: A(f"s_add_u32 s72, s69, {i*1024}")
            A(f"buffer_load_dwordx4 v[{PD+4*i}:{PD+4*i+3}], v21, s[24:27], s72 offen offset:{(i%4)*1024} sc1")
    pd_loads()
    A("s_branch K1_yB_loop")
    A("K1_yB_tail:")
    CB.tail()
    stamp(8)
    transpose_acc()
    A("s_cmp_eq_u32 s91, 3\ns_cbranch_scc1 K1_send")
    A("s_cmp_eq_u32 s71, 1\ns_cbranch_scc1 K1_have")
    A("s_mov_b32 s73, 0x40000")
    A("K1_xpoll:")
    A("buffer_load_dword v24, v22, s[24:27], s70 offen sc1")
    A("s_waitcnt vmcnt(0)\nv_readfirstlane_b32 s71, v24\ns_cmp_eq_u32 s71, 1\ns_cbranch_scc1 K1_xok")
    A("s_sleep 1\ns_sub_u32 s73, s73, 1\ns_cmp_lg_u32 s73, 0\ns_cbranch_scc1 K1_xpoll")
    A("K1_xok:")
    pd_loads()
    A("K1_have:")
    stamp(9)
    A("s_lshl_b32 s65, s62, 12\ns_lshl_b32 s66, s64, 2\ns_add_u32 s65, s65, s66")
    if STAMP: A("s_waitcnt vmcnt(0)")
    for k in range(16):
        if k: A(f"s_add_u32 s65, s65, {4*4096}")
        A(f"s_waitcnt vmcnt(15) lgkmcnt({min(15-k, 15)})")
        a = FR + 4*k; r = PD + 4*k
        A(f"v_pk_add_f32 v[{a}:{a+1}], v[{a}:{a+1}], v[{r}:{r+1}]\nv_pk_add_f32 v[{a+2}:{a+3}], v[{a+2}:{a+3}], v[{r+2}:{r+3}]")
        A(f"buffer_store_dwordx4 v[{a}:{a+3}], v20, s[28:31], s65 offen{OUTSC}")
    stamp(10)
    A("s_endpgm")
    A("K1_send:")
    if BASE3:
        A("s_waitcnt vmcnt(0)")
        for i in range(2):
            A(f"v_lshlrev_b32 v{228+2*i}, 16, v{224+i}\nv_and_b32 v{229+2*i}, 0xffff0000, v{224+i}")
    for k in range(16):
        a = FR + 4*k
        if k % 4 == 0: A(f"s_add_u32 s72, s69, {k*1024}")
        if BASE3 and k % 2 == 0:
            its = [(XR + 2*kk + h, 192 + 2*kk + h, 228 + 2*h, 128 + 4*kk + 2*h, 232 + 4*(kk & 1) + 2*h) for kk in (k, k+1) for h in range(2)]
            for (x, n, d, b, t) in its: A(f"v_lshlrev_b32 v{t}, 16, v{n}\nv_and_b32 v{t+1}, 0xffff0000, v{n}")
            for (x, n, d, b, t) in its: A(f"v_pk_mul_f32 v[{t}:{t+1}], v[{t}:{t+1}], v[{d}:{d+1}]")
            for (x, n, d, b, t) in its: A(f"v_lshlrev_b32 v{b}, 16, v{x}\nv_and_b32 v{b+1}, 0xffff0000, v{x}")
            for (x, n, d, b, t) in its: A(rnd(t, t) + "\n" + rnd(t+1, t+1))
            for (x, n, d, b, t) in its: A(f"v_pk_add_f32 v[{b}:{b+1}], v[{b}:{b+1}], v[{t}:{t+1}]")
        A(f"s_waitcnt lgkmcnt({15-k})")
        if BASE3:
            A(f"v_pk_add_f32 v[{a}:{a+1}], v[{a}:{a+1}], v[{128+4*k}:{129+4*k}]\nv_pk_add_f32 v[{a+2}:{a+3}], v[{a+2}:{a+3}], v[{130+4*k}:{131+4*k}]")
        A(f"buffer_store_dwordx4 v[{a}:{a+3}], v21, s[24:27], s72 offen offset:{(k%4)*1024} sc1")
    A("s_waitcnt vmcnt(0)")
    A("s_mov_b64 exec, 1")
    A("buffer_store_dword v23, v22, s[24:27], s70 offen sc1")
    A("s_mov_b64 exec, -1")
    stamp(9)
    A("s_endpgm")
    A("K1_g1prod:")
    CPOL[0] = NTB
    voff_N(2048, 8)
    A(f"s_lshl_b32 s86, s39, 19")
    if XN: A(f"s_add_u32 s86, s86, {XN}")
    A("s_lshl_b32 s89, s40, 17")
    itA = [(24, 8 + (j & 1), 81, j*8*2048, j*1024) for j in range(32)]
    itB = [(12 if (j >> 1) & 1 else 8, 8 + (j & 1), 82, ((j >> 3)*32 + ((j >> 2) & 1)*16 + (j & 1)*8)*2048, C1.AB + j*1024) for j in range(16)]
    def st1():
        rot_index()
        A("s_lshl_b32 s83, s85, 7\ns_add_u32 s81, s83, s86\ns_add_u32 s82, s83, s89")
    allit = itA + itB
    A(f"s_and_b32 s78, s33, 1\ns_mul_i32 s66, s78, {N3A}\ns_mul_i32 s78, s78, {NB3}\ns_sub_u32 s78, s78, {N1A}\ns_mov_b32 s79, {(N1A+NB1)//RG*RG}\ns_mov_b32 s69, {(N1A+NB1)//4*4}")
    A(f"s_mov_b32 s67, {N1A-4}\ns_mov_b32 s68, {NB1}")
    A("v_lshlrev_b32 v10, 7, v1\nv_and_b32 v11, 31, v1\nv_lshlrev_b32 v11, 7, v11\ns_mov_b32 s70, s3")
    A("s_cmp_eq_u32 s32, 5\ns_cbranch_scc1 K1_g1p1")
    tw1 = [(16, 10, 75, 128*8192, None)] if T1 else []
    A(f"s_lshl_b32 s75, s70, 13\ns_add_u32 s75, s75, {T1_SKIP*128*8192}")
    def tb(n0, n):
        A("s_bitcmp1_b32 s3, 6\ns_cselect_b32 s28, s12, s8\ns_cselect_b32 s29, s13, s9\ns_mov_b32 s30, 2097152\ns_mov_b32 s31, 0x20000")
        A(f"s_and_b32 s74, s3, 63\ns_lshl_b32 s74, s74, 15\ns_add_u32 s74, s74, {n0*8192}")
        for i in range(n):
            A(f"buffer_load_dword v21, v10, s[28:31], s74 offen{NTT}\ns_add_u32 s74, s74, 8192")
        return n
    TB0 = P("TB0", 0); TB1 = P("TB1", 0)
    def pre1():
        if TB1: tb(TB0, TB1)
        for i in range(PT1):
            A(f"s_waitcnt vmcnt({P('PT_INF', 3)})\nbuffer_load_dword v21, v10, s[16:19], s75 offen\ns_add_u32 s75, s75, {128*8192}")
    producer("K1_g1p0", C1, with_spf(allit[:24] + tw1, SP1), 16, st1, isws, False, pre1, E1, lambda: tb(0, TB0) if TB0 else 0)
    itC = [(8, 8 + (j & 1), 81, j*8*2048, j*1024) for j in range(16)]
    itU = [(24, 18, 81, j*1024, j*1024) for j in range(16)]
    itH = [(24, 18, 82, j*1024, CB.AB + j*1024) for j in range(16)]
    itW = [(16, 16 + (j & 1), 82, j*4*4096, CB.AB + j*1024) for j in range(16)]
    def ya_index():
        rot_index()
        A("s_add_u32 s85, s85, s66\ns_lshr_b32 s83, s85, 3\ns_lshl_b32 s83, s83, 2\ns_and_b32 s74, s85, 3\ns_add_u32 s83, s83, s74")
        A("s_bitcmp1_b32 s85, 2")
    def stC():
        ya_index()
        A("s_cselect_b32 s8, s6, s4\ns_cselect_b32 s9, s7, s5")
        A("s_lshl_b32 s83, s83, 7\ns_add_u32 s81, s86, s83")
    UN = [0]
    def need_flags():
        UN[0] += 1; tag = f"K1_uf{UN[0]}"
        A(f"s_andn2_b64 s[74:75], s[70:71], s[76:77]\ns_cbranch_scc0 {tag}_ok")
        A("s_mov_b32 s73, 0x40000")
        A(f"{tag}_poll:")
        A(f"buffer_load_dword v20, v19, s[24:27], s72 offen{PP_F}")
        A("s_waitcnt vmcnt(0)")
        A(f"v_cmp_eq_u32 s[76:77], 1, v20\ns_nop 0\ns_andn2_b64 s[74:75], s[70:71], s[76:77]\ns_cbranch_scc0 {tag}_ok")
        A(f"s_sleep {PSLF}\ns_sub_u32 s73, s73, 1\ns_cmp_lg_u32 s73, 0\ns_cbranch_scc1 {tag}_poll")
        A(f"{tag}_ok:")
    def stU():
        rot_index(79)
        A("s_add_u32 s85, s85, s78\ns_lshl_b32 s81, s85, 14\ns_add_u32 s81, s81, s86")
        A("s_mul_i32 s83, s85, 18726\ns_lshr_b32 s74, s83, 16\ns_add_u32 s83, s83, 9363\ns_lshr_b32 s83, s83, 16")
        A("s_lshl_b32 s74, s74, 2\ns_lshl_b32 s83, s83, 2\ns_lshl_b64 s[70:71], 15, s74\ns_lshl_b64 s[74:75], 15, s83\ns_or_b64 s[70:71], s[70:71], s[74:75]")
        need_flags()
    def stH():
        ya_index()
        A("s_cselect_b32 s82, 16, 0\ns_add_u32 s82, s82, s83\ns_lshl_b32 s82, s82, 14\ns_add_u32 s82, s82, s89")
        A("s_lshl_b32 s83, s83, 1\ns_lshl_b64 s[70:71], 3, s83")
        need_flags()
    def stW():
        rot_index(79)
        A("s_add_u32 s85, s85, s78\ns_lshl_b32 s82, s85, 18\ns_add_u32 s82, s82, s89")
    def setU():
        A(f"s_mul_i32 s86, s37, {56*16384}\ns_add_u32 s86, s86, {U}")
        A(f"v_lshlrev_b32 v19, 2, v1\ns_lshl_b32 s72, s37, 8\ns_add_u32 s72, s72, {UF}\ns_mov_b64 s[76:77], 0")
    def setW():
        srd(16, 20, 14680064)
        voff_T128(4096, 16)
        A("s_lshl_b32 s89, s43, 8")
    A("K1_pb_a:")
    CPOL[0] = NTC
    A("v_lshlrev_b32 v18, 4, v1")
    srd(8, 4, 2097152)
    A("s_lshl_b32 s86, s37, 18")
    A("s_barrier")
    prod_pro(CA, itC, stC)
    prod_p0(CA, 16)
    A("s_mov_b32 s84, s67")
    prod_loop("K1_pbC", CA, itC, stC)
    setU()
    A("s_mov_b32 s84, s68")
    prod_loop("K1_pbU", CB, itU, stU, LDSC)
    prod_tail(CB, 16)
    A("s_waitcnt lgkmcnt(0)\ns_endpgm")
    A("K1_g1p1:")
    CPOL[0] = NTB
    tc = [(28, 11, 75, 64*4096, None)] if TC else []
    A("s_and_b32 s71, s70, 1\ns_cmp_eq_u32 s71, 1\ns_cselect_b32 s28, s6, s4\ns_cselect_b32 s29, s7, s5\ns_mov_b32 s30, 2097152\ns_mov_b32 s31, 0x20000")
    A("s_lshr_b32 s75, s70, 1\ns_lshl_b32 s75, s75, 12")
    producer("K1_g1p1", C1, with_spf(allit[24:] + tc, SP1), 16, st1, isws, True, None, E1)
    A("K1_pb_b:")
    CPOL[0] = NTW2
    A("v_lshlrev_b32 v18, 4, v1")
    A(f"s_lshl_b32 s89, s43, 19\ns_add_u32 s89, s89, {HT}")
    A(f"v_and_b32 v19, 31, v1\nv_lshlrev_b32 v19, 2, v19\ns_lshl_b32 s72, s43, 8\ns_add_u32 s72, s72, {HTF}\ns_mov_b64 s[76:77], 0")
    A("s_barrier")
    if TW1 or TW3:
        srd(16, 20, 14680064)
        A(f"s_lshl_b32 s64, s3, {13+TWL}\ns_cmp_eq_u32 s34, 1\ns_cselect_b32 s65, {TW1}, {TW3}\ns_cselect_b32 s62, {TW1O << 20}, {TW3O << 20}\ns_add_u32 s64, s64, s62")
        A(f"v_lshlrev_b32 v10, {7+TWL}, v1")
        A("s_cmp_eq_u32 s65, 0\ns_cbranch_scc1 K1_tw_done")
        A("K1_tw:\nbuffer_load_dword v21, v10, s[16:19], s64 offen")
        if TWS: A(f"s_sleep {TWS}")
        A(f"s_add_u32 s64, s64, {0x100000 << TWL}\ns_sub_u32 s65, s65, 1\ns_cmp_lg_u32 s65, 0\ns_cbranch_scc1 K1_tw")
        A("K1_tw_done:")
    prod_pro(CA, itH, stH, LDSC)
    prod_p0(CA, 16)
    A("s_mov_b32 s84, s67")
    prod_loop("K1_pbH", CA, itH, stH, LDSC)
    setW()
    if NTF2:
        A("v_lshrrev_b32 v2, 1, v1\nv_lshlrev_b32 v2, 12, v2\nv_and_b32 v3, 1, v1\nv_lshlrev_b32 v3, 7, v3\nv_add_u32 v22, v2, v3")
        PRE[0] = [(16, 22, 82, g*32*4096) for g in range(2)]
    A("s_mov_b32 s84, s68")
    prod_loop("K1_pbW", CB, itW, stW)
    prod_tail(CB, 16)
    A("s_waitcnt lgkmcnt(0)\nK1_end:\ns_endpgm\nK1_code_end:")

hdr = open("parallel_sum__ssm_conv_s5__mixer_token_mlp__prompt.s.ref").read().split("; Override launch geometry")[0]
A(hdr.rstrip())
A(f"; @launch kernel=k1_kernel grid=(256,1,1) block=(384,1,1) lds={K1_LDS}")
A('.amdgcn_target "amdgcn-amd-amdhsa--gfx950"')
gen_k1()
kernel_desc("k1_kernel", 256, 102)
open(OUT, "w").write("\n".join(L) + "\n")
print("wrote", OUT, len(L), "lines")
```
